```python
import torch

def _softmax(x, axis=-1):
    return torch.softmax(x, dim=axis)
def _gelu(x):
    return torch.nn.functional.gelu(x, approximate="tanh")
def _silu(x):
    return torch.nn.functional.silu(x)
def _sigmoid(x):
    return torch.sigmoid(x)
def _layernorm(x, axis=-1, eps=1e-5):
    m = x.mean(dim=axis, keepdim=True)
    v = x.var(dim=axis, keepdim=True, unbiased=False)
    return (x - m) / torch.sqrt(v + eps)
def _scatter_add(tgt, idx, src, axis=0):
    return tgt.clone().index_add_(axis, idx, src)
def _segment_sum(src, seg, n):
    out = torch.zeros((n,) + src.shape[1:], dtype=src.dtype)
    return out.index_add_(0, seg, src)
def _pad(x, pw):
    flat = tuple(v for pair in reversed(pw) for v in pair)
    return torch.nn.functional.pad(x, flat)

kernel_name = 'recurrent_scan__mha_block__glu_gated_geglu__prompt'

def setup_inputs():

    _w = (lambda a: (lambda t: t.to(torch.bfloat16) if t.is_floating_point() else t)(torch.as_tensor(a)))
    def _A_setup():
        B, S, D, H = 1, 2048, 640, 32
        return {
            "x": _w((lambda *s: torch.randn(*s, dtype=torch.bfloat16) * 0.05)(B, S, D)),
            "wqkv": _w((lambda *s: torch.randn(*s, dtype=torch.bfloat16) * 0.2)(D, 3 * D)),
            "wo": _w((lambda *s: torch.randn(*s, dtype=torch.bfloat16) * 0.2)(D, D)),
        }
    _A_in = _A_setup()

    def _B_setup():
        B, S, Dm, Df = 1, 2048, 640, 1728
        return {
            "x": _w((lambda *s: torch.randn(*s, dtype=torch.bfloat16) * 0.05)(B, S, Dm)),
            "w_gate": _w((lambda *s: torch.randn(*s, dtype=torch.bfloat16) * 0.1)(Dm, Df) * (Dm ** -0.5)),
            "w_up": _w((lambda *s: torch.randn(*s, dtype=torch.bfloat16) * 0.1)(Dm, Df) * (Dm ** -0.5)),
            "w_down": _w((lambda *s: torch.randn(*s, dtype=torch.bfloat16) * 0.1)(Df, Dm) * (Df ** -0.5)),
        }
    _B_in = _B_setup()

    return {
        "A_x": _A_in["x"],
        "A_wqkv": _A_in["wqkv"],
        "A_wo": _A_in["wo"],
        "B_x": _B_in["x"],
        "B_w_gate": _B_in["w_gate"],
        "B_w_up": _B_in["w_up"],
        "B_w_down": _B_in["w_down"],
    }

def reference(A_x, A_wqkv, A_wo, B_x, B_w_gate, B_w_up, B_w_down):
    def _A_ref(x, wqkv, wo):
        B, S, D = x.shape
        H = 32
        Dh = D // H
        qkv = (lambda x, *d: x.permute(*d))((x @ wqkv).reshape(B, S, 3, H, Dh), 2, 0, 3, 1, 4)
        q, k, v = qkv[0], qkv[1], qkv[2]
        scores = torch.einsum("bhqd,bhkd->bhqk", q, k) * (Dh ** -0.5)
        p = _softmax(scores, axis=-1)
        o = torch.einsum("bhqk,bhkd->bhqd", p, v)
        return (lambda x, *d: x.permute(*d))(o, 0, 2, 1, 3).reshape(B, S, D) @ wo

    def _B_ref(x, w_gate, w_up, w_down):
        g = torch.einsum("bsd,df->bsf", x, w_gate)
        u = torch.einsum("bsd,df->bsf", x, w_up)
        h = _gelu(g) * u
        return torch.einsum("bsf,fd->bsd", h, w_down)

    x = A_x
    xn = _layernorm(x, axis=-1)
    s = _A_ref(xn, A_wqkv, A_wo)
    g = _silu(_B_ref(xn, B_w_gate, B_w_up, B_w_down))
    return x + s * g
```

```python
import struct

def v(i): return f"v{i}"
def s(i): return f"s{i}"
def vr(i, n): return f"v[{i}:{i+n-1}]" if n > 1 else f"v{i}"
def sr(i, n): return f"s[{i}:{i+n-1}]" if n > 1 else f"s{i}"
def f32bits(x): return struct.unpack("<I", struct.pack("<f", x))[0]
def hx(x): return f"0x{x & 0xffffffff:x}"
def fhex(x): return hx(f32bits(x))

class Asm:
    def __init__(self):
        self.lines = []
        self._lab = 0
    def __call__(self, txt):
        for ln in txt.split("\n"):
            ln = ln.strip()
            if ln: self.lines.append("    " + ln)
    def raw(self, txt): self.lines.append(txt)
    def label(self, name): self.lines.append(name + ":")
    def newlabel(self, base="L"):
        self._lab += 1
        return f"{base}_{self._lab}"
    def comment(self, c): self.lines.append("    ; " + c)
    def text(self): return "\n".join(self.lines) + "\n"

    def srd(self, dst, base, nbytes, add=0):
        if add:
            self(f"s_add_u32 s{dst}, s{base}, {hx(add)}")
            self(f"s_addc_u32 s{dst+1}, s{base+1}, 0")
        else:
            self(f"s_mov_b32 s{dst}, s{base}")
            self(f"s_mov_b32 s{dst+1}, s{base+1}")
        self(f"s_mov_b32 s{dst+2}, {hx(nbytes)}")
        self(f"s_mov_b32 s{dst+3}, 0x20000")

def kernel_header(name):
    return f""".text
.globl {name}
.p2align 8
.type {name},@function
{name}:
"""

def kernel_desc(name, vgpr, sgpr=102, accum=None, y=False):
    if accum is None: accum = (vgpr + 3) // 4 * 4
    return f""".section .rodata,"a"
.p2align 6
.amdhsa_kernel {name}
  .amdhsa_next_free_vgpr {vgpr}
  .amdhsa_next_free_sgpr {sgpr}
  .amdhsa_accum_offset {accum}
  .amdhsa_group_segment_fixed_size 0
  .amdhsa_kernarg_size 80
  .amdhsa_user_sgpr_count 2
  .amdhsa_user_sgpr_kernarg_segment_ptr 1
  .amdhsa_system_sgpr_workgroup_id_x 1
.end_amdhsa_kernel
"""
```

```python
from asmlib import *
from layout import *

BIAS = 90.0

def gen_attn(a: Asm, name="attn_kernel", force_slow=False, standalone=True, nwg=256, stamps=False):
    VL, VK1, VK2, VV = 1, 2, 3, 4
    T0, T1, T2 = 5, 6, 7
    M = 8
    Q1 = 12
    Q2 = 28
    P = 36
    SB = [44, 60]
    O = [76 + 16 * j for j in range(4)]
    K1 = [140 + 12 * b for b in range(4)]
    V0 = [144 + 12 * b for b in range(4)]
    V1 = [148 + 12 * b for b in range(4)]
    K2 = [188 + 2 * b for b in range(4)]
    TA = 196
    NV = 208
    SRDQ, SRDK, SRDO = 8, 12, 16
    sW, sHEAD, sQB, sQH, sKH, sKOFF, sCNT = 20, 21, 22, 23, 24, 25, 26
    sMLO, sMV, sMHI = 28, 30, 32
    sT0, sT1, sBAD = 34, 35, 36
    sQOFF = 38
    L = lambda x: f"{name}_{x}"

    if standalone:
        a.raw(kernel_header(name))
        a(f"s_cmp_ge_u32 s2, {nwg}")
        a(f"s_cbranch_scc1 {L('end')}")
    def stamp(i):
        if stamps:
            a(f"s_memtime s[{60+4*i}:{61+4*i}]")
            a(f"s_memrealtime s[{62+4*i}:{63+4*i}]")
            a("s_waitcnt lgkmcnt(0)")
    stamp(0)
    a(f"s_load_dwordx2 s[4:5], s[0:1], {KA_WS}")
    a(f"v_and_b32 v{VL}, 63, v0")
    a(f"v_lshrrev_b32 v{T0}, 6, v0")
    a("s_nop 0")
    a(f"v_readfirstlane_b32 s{sW}, v{T0}")
    a(f"s_and_b32 s{sHEAD}, s2, 7")
    a(f"s_lshl_b32 s{sHEAD}, s{sHEAD}, 2")
    a(f"s_lshr_b32 s{sT0}, s2, 3")
    a(f"s_and_b32 s{sT0}, s{sT0}, 3")
    a(f"s_add_u32 s{sHEAD}, s{sHEAD}, s{sT0}")
    a(f"s_lshr_b32 s{sQB}, s2, 5")
    a(f"s_and_b32 s{sQH}, s{sW}, 1")
    a(f"s_lshr_b32 s{sKH}, s{sW}, 1")
    a(f"s_mov_b32 s{sMLO}, -1"); a(f"s_mov_b32 s{sMLO+1}, 0")
    a(f"s_mov_b32 s{sMV}, 0xfffff"); a(f"s_mov_b32 s{sMV+1}, 0xfffff")
    a(f"s_mov_b32 s{sMHI}, 0"); a(f"s_mov_b32 s{sMHI+1}, -1")
    a(f"v_lshlrev_b32 v{VK1}, 4, v{VL}")
    a(f"v_and_b32 v{T0}, 31, v{VL}")
    a(f"v_lshlrev_b32 v{VK2}, 3, v{T0}")
    a(f"v_lshrrev_b32 v{T1}, 5, v{VL}")
    a(f"v_mul_u32_u24 v{T1}, 320, v{T1}")
    a(f"v_lshl_add_u32 v{VV}, v{T0}, 4, v{T1}")
    a(f"v_mov_b32 v{T2}, 0x3f803f80")
    a(f"v_cmp_eq_u32 vcc, 20, v{T0}")
    a(f"v_mov_b32 v{T1}, 0")
    a("s_nop 0")
    a(f"v_cndmask_b32 v{T1}, v{T1}, v{T2}, vcc")
    for b in range(4):
        for r in range(4):
            a(f"v_mov_b32 v{V0[b]+r}, v{T1}")
            a(f"v_mov_b32 v{V1[b]+r}, v{T1}")
        a(f"v_mov_b32 v{K2[b]}, v{T2}")
        a(f"v_mov_b32 v{K2[b]+1}, 0")
    for j in range(4):
        a(f"v_mov_b32 v{Q2+2*j}, 0"); a(f"v_mov_b32 v{Q2+2*j+1}, 0")
    for r in range(8): a(f"v_mov_b32 v{P+r}, 0")
    for j in range(4):
        for r in range(16): a(f"v_mov_b32 v{O[j]+r}, 0")
    a("s_waitcnt lgkmcnt(0)")
    a.srd(SRDQ, 4, NH * NT * QBLK, WS_Q)
    a.srd(SRDK, 4, NH * NT * KVBLK + 8 * KVBLK, WS_KV)
    a.srd(SRDO, 4, NT * NS_O * 1024, WS_O)
    a(f"s_lshl_b32 s{sT0}, s{sHEAD}, 6")
    a(f"s_lshl_b32 s{sT1}, s{sQB}, 3")
    a(f"s_add_u32 s{sT0}, s{sT0}, s{sT1}")
    a(f"s_lshl_b32 s{sT1}, s{sQH}, 2")
    a(f"s_add_u32 s{sT0}, s{sT0}, s{sT1}")
    a(f"s_mul_i32 s{sQOFF}, s{sT0}, {QBLK}")
    a(f"s_lshl_b32 s{sT0}, s{sHEAD}, 6")
    a(f"s_lshl_b32 s{sT1}, s{sKH}, 5")
    a(f"s_add_u32 s{sT0}, s{sT0}, s{sT1}")
    a(f"s_mul_i32 s{sKOFF}, s{sT0}, {KVBLK}")
    a(f"s_mov_b32 s40, s{sKOFF}")

    def load_q():
        for j in range(4):
            a(f"s_add_u32 s{sT0}, s{sQOFF}, {j*QBLK}")
            a(f"buffer_load_dwordx4 {vr(Q1+4*j,4)}, v{VK1}, {sr(SRDQ,4)}, s{sT0} offen")
        a(f"s_mov_b64 exec, {sr(sMLO,2)}")
        for j in range(4):
            a(f"s_add_u32 s{sT0}, s{sQOFF}, {j*QBLK}")
            a(f"buffer_load_dwordx2 {vr(Q2+2*j,2)}, v{VK2}, {sr(SRDQ,4)}, s{sT0} offen offset:1024")
        a("s_mov_b64 exec, -1")

    def load_kv(b):
        a(f"buffer_load_dwordx4 {vr(K1[b],4)}, v{VK1}, {sr(SRDK,4)}, s{sKOFF} offen")
        a(f"s_mov_b64 exec, {sr(sMLO,2)}")
        a(f"buffer_load_dwordx2 {vr(K2[b],2)}, v{VK2}, {sr(SRDK,4)}, s{sKOFF} offen offset:1024")
        a(f"s_mov_b64 exec, {sr(sMV,2)}")
        a(f"buffer_load_dwordx4 {vr(V0[b],4)}, v{VV}, {sr(SRDK,4)}, s{sKOFF} offen offset:1280")
        a(f"buffer_load_dwordx4 {vr(V1[b],4)}, v{VV}, {sr(SRDK,4)}, s{sKOFF} offen offset:1920")
        a("s_mov_b64 exec, -1")
        a(f"s_add_u32 s{sKOFF}, s{sKOFF}, {KVBLK}")

    def qk1(sb, b, j): a(f"v_mfma_f32_32x32x16_bf16 {vr(SB[sb],16)}, {vr(K1[b],4)}, {vr(Q1+4*j,4)}, 0")
    def qk2(sb, b, j): a(f"v_mfma_f32_32x32x8bf16_1k {vr(SB[sb],16)}, {vr(K2[b],2)}, {vr(Q2+2*j,2)}, {vr(SB[sb],16)}")
    def pv(u, b, j):
        V = V0[b] if u == 0 else V1[b]
        a(f"v_mfma_f32_32x32x16_bf16 {vr(O[j],16)}, {vr(V,4)}, {vr(P+4*u,4)}, {vr(O[j],16)}")

    load_q()
    load_kv(0); load_kv(1); load_kv(2)
    a("s_waitcnt vmcnt(4)")
    def crosshalf_max(r):
        a(f"v_mov_b32 v{T1}, v{r}")
        a(f"v_mov_b32 v{T2}, v{r}")
        a("s_nop 1")
        a(f"v_permlane32_swap_b32 v{T1}, v{T2}")
        a("s_nop 1")
        a(f"v_max_f32 v{r}, v{T1}, v{T2}")
    for j in range(4):
        qk1(0, 0, j); qk1(1, 1, j)
        qk2(0, 0, j); qk2(1, 1, j)
        a("s_nop 15"); a("s_nop 7")
        vals = [SB[0] + i for i in range(16)] + [SB[1] + i for i in range(16)]
        a(f"v_max3_f32 v{T0}, v{vals[0]}, v{vals[1]}, v{vals[2]}")
        k = 3
        while k < 32:
            b2 = vals[k + 1] if k + 1 < 32 else vals[k]
            a(f"v_max3_f32 v{T0}, v{T0}, v{vals[k]}, v{b2}")
            k += 2
        crosshalf_max(T0)
        a(f"v_add_f32 v{T0}, {fhex(BIAS)}, v{T0}")
        a(f"v_sub_f32 v{T0}, 0, v{T0}")
        a(f"v_cvt_pk_bf16_f32 v{T1}, v{T0}, v{T0}")
        a(f"v_lshlrev_b32 v{T1}, 16, v{T1}")
        a(f"v_sub_f32 v{T2}, v{T0}, v{T1}")
        a(f"v_cvt_pk_bf16_f32 v{T2}, v{T0}, v{T2}")
        a(f"v_and_b32 v{T0}, 0xffff0000, v{T2}")
        a(f"v_add_f32 v{T0}, v{T0}, v{T1}")
        a(f"v_sub_f32 v{M+j}, 0, v{T0}")
        a(f"s_mov_b64 exec, {sr(sMHI,2)}")
        a(f"v_mov_b32 v{Q2+2*j}, v{T2}")
        a("s_mov_b64 exec, -1")
    a("s_nop 1")
    if force_slow:
        a(f"s_branch {L('slow')}")
    stamp(1)
    qk1(0, 0, 0); qk2(0, 0, 0)
    a("s_nop 15"); a("s_nop 3")
    a(f"s_mov_b32 s{sCNT}, 8")
    a(".p2align 6")
    a.label(L('loop'))
    def e(sb, i): a(f"v_exp_f32 v{SB[sb]+i}, v{SB[sb]+i}")
    def c(sb, i): a(f"v_cvt_pk_bf16_f32 v{P+i}, v{SB[sb]+2*i}, v{SB[sb]+2*i+1}")
    for n in range(16):
        t, j = n // 4, n % 4
        tn, jn = ((n + 1) // 4) % 4, (n + 1) % 4
        tp, jp = ((n - 1) // 4) % 4, (n - 1) % 4
        cur, nxt = n & 1, (n + 1) & 1
        if j == 3: a("s_waitcnt vmcnt(8)")
        qk1(nxt, tn, jn)
        if j == 1: load_kv((t + 3) % 4)
        for i in range(0, 4): e(cur, i)
        c(cur, 0); c(cur, 1)
        qk2(nxt, tn, jn)
        for i in range(4, 8): e(cur, i)
        c(cur, 2); c(cur, 3)
        pv(1, tp, jp)
        for i in range(8, 12): e(cur, i)
        c(cur, 4); c(cur, 5)
        pv(0, t, j)
        for i in range(12, 16): e(cur, i)
        c(cur, 6); c(cur, 7)
    a(f"s_sub_u32 s{sCNT}, s{sCNT}, 1")
    a(f"s_cmp_lg_u32 s{sCNT}, 0")
    a(f"s_cbranch_scc1 {L('loop')}")
    a("s_nop 1")
    pv(1, 3, 3)
    a("s_nop 15"); a("s_nop 7")
    stamp(2)
    a(f"s_mov_b64 {sr(sBAD,2)}, 0")
    LREG = TA
    def get_l(j):
        a(f"v_mov_b32 v{T1}, v{O[j]+8}")
        a(f"v_mov_b32 v{LREG+j}, v{O[j]+8}")
        a("s_nop 1")
        a(f"v_permlane32_swap_b32 v{T1}, v{LREG+j}")
        a("s_nop 1")
    for j in range(4):
        get_l(j)
        a(f"v_mul_f32 v{T0}, 0, v{O[j]}")
        for r in range(1, 12):
            a(f"v_fmac_f32 v{T0}, 0, v{O[j]+r}")
        a(f"v_cmp_u_f32 vcc, v{T0}, v{T0}")
        a(f"s_or_b64 {sr(sBAD,2)}, {sr(sBAD,2)}, vcc")
        a(f"v_mov_b32 v{T0}, {fhex(2.0**120)}")
        a(f"v_cmp_nlt_f32 vcc, v{LREG+j}, v{T0}")
        a(f"s_or_b64 {sr(sBAD,2)}, {sr(sBAD,2)}, vcc")
        a(f"v_mov_b32 v{T0}, {fhex(2.0**-120)}")
        a(f"v_cmp_ngt_f32 vcc, v{LREG+j}, v{T0}")
        a(f"s_or_b64 {sr(sBAD,2)}, {sr(sBAD,2)}, vcc")
    a(f"s_cmp_eq_u64 {sr(sBAD,2)}, 0")
    a(f"s_cbranch_scc1 {L('fin')}")
    a.label(L('slow'))
    a("s_waitcnt vmcnt(0)")
    a(f"s_mov_b32 s{sKOFF}, s40")
    a(f"s_mov_b64 exec, {sr(sMHI,2)}")
    for j in range(4): a(f"v_mov_b32 v{Q2+2*j}, 0")
    a("s_mov_b64 exec, -1")
    for j in range(4):
        a(f"v_mov_b32 v{M+j}, 0xff800000")
        for r in range(16): a(f"v_mov_b32 v{O[j]+r}, 0")
    a(f"s_mov_b32 s{sCNT}, 32")
    a.label(L('sloop'))
    load_kv(0)
    a("s_waitcnt vmcnt(0)")
    for j in range(4):
        qk1(0, 0, j); qk2(0, 0, j)
        a("s_nop 15"); a("s_nop 7")
        vals = [SB[0] + i for i in range(16)]
        a(f"v_max3_f32 v{T0}, v{vals[0]}, v{vals[1]}, v{vals[2]}")
        k = 3
        while k < 16:
            b2 = vals[k + 1] if k + 1 < 16 else vals[k]
            a(f"v_max3_f32 v{T0}, v{T0}, v{vals[k]}, v{b2}")
            k += 2
        crosshalf_max(T0)
        a(f"v_max_f32 v{T0}, v{T0}, v{M+j}")
        a(f"v_sub_f32 v{T1}, v{M+j}, v{T0}")
        a(f"v_exp_f32 v{T1}, v{T1}")
        a(f"v_mov_b32 v{M+j}, v{T0}")
        for r in range(16): a(f"v_sub_f32 v{SB[0]+r}, v{SB[0]+r}, v{T0}")
        for r in range(16): a(f"v_mul_f32 v{O[j]+r}, v{O[j]+r}, v{T1}")
        for r in range(16): e(0, r)
        a("s_nop 1")
        for i in range(8): c(0, i)
        a("s_nop 1")
        pv(0, 0, j); pv(1, 0, j)
        a("s_nop 15"); a("s_nop 7")
    a(f"s_sub_u32 s{sCNT}, s{sCNT}, 1")
    a(f"s_cmp_lg_u32 s{sCNT}, 0")
    a(f"s_cbranch_scc1 {L('sloop')}")
    for j in range(4): get_l(j)
    a.label(L('fin'))
    LL = TA + 4
    for j in range(4):
        a(f"v_rcp_f32 v{T0}, v{LREG+j}")
        a(f"v_log_f32 v{T1}, v{LREG+j}")
        a("s_nop 0")
        a(f"v_add_f32 v{LL+j}, v{T1}, v{M+j}")
        for r in range(12): a(f"v_mul_f32 v{O[j]+r}, v{O[j]+r}, v{T0}")
    VA, VB = TA + 8, TA + 9
    a(f"s_mul_i32 s{sT0}, s{sW}, 6656")
    a(f"s_xor_b32 s{sT1}, s{sW}, 2")
    a(f"s_mul_i32 s{sT1}, s{sT1}, 6656")
    a(f"v_lshlrev_b32 v{VA}, 4, v{VL}")
    a(f"v_add_u32 v{VB}, s{sT1}, v{VA}")
    a(f"v_add_u32 v{VA}, s{sT0}, v{VA}")
    VA4, VB4 = TA + 10, TA + 11
    a(f"v_lshlrev_b32 v{VA4}, 2, v{VL}")
    a(f"v_add_u32 v{VB4}, s{sT1}, v{VA4}")
    a(f"v_add_u32 v{VA4}, s{sT0}, v{VA4}")
    OF0, OF1, OF2 = Q1, Q1 + 1, Q1 + 2
    a(f"s_mul_i32 s{sT0}, s{sHEAD}, 5")
    a(f"v_lshrrev_b32 v{T0}, 5, v{VL}")
    a(f"v_and_b32 v{T1}, 31, v{VL}")
    a(f"v_lshlrev_b32 v{T1}, 4, v{T1}")
    for idx, (dst, add) in enumerate(((OF0, 0), (OF1, 2), (OF2, 4))):
        if idx < 2:
            a(f"v_add_u32 v{T2}, s{sT0}, v{T0}")
            if add: a(f"v_add_u32 v{T2}, {add}, v{T2}")
        else:
            a(f"v_mov_b32 v{T2}, s{sT0}")
            a(f"v_add_u32 v{T2}, {add}, v{T2}")
        a(f"v_lshrrev_b32 v{dst}, 2, v{T2}")
        a(f"v_lshlrev_b32 v{dst}, 10, v{dst}")
        a(f"v_and_b32 v{Q1+3}, 1, v{T2}")
        a(f"v_lshl_add_u32 v{dst}, v{Q1+3}, 9, v{dst}")
        a(f"v_bfe_u32 v{Q1+3}, v{T2}, 1, 1")
        a(f"v_lshl_add_u32 v{dst}, v{Q1+3}, 3, v{dst}")
        a(f"v_add_u32 v{dst}, v{dst}, v{T1}")
    a(f"s_lshl_b32 s{sT0}, s{sQB}, 3")
    a(f"s_lshl_b32 s{sT1}, s{sQH}, 2")
    a(f"s_add_u32 s{sT0}, s{sT0}, s{sT1}")
    a(f"s_mul_i32 s41, s{sT0}, {NS_O*1024}")
    a(f"s_cmp_eq_u32 s{sKH}, 0")
    a(f"s_cbranch_scc0 {L('kh1')}")
    def finish(keep, send):
        for jj, j in enumerate(send):
            for q in range(3):
                a(f"ds_write_b128 v{VA}, {vr(O[j]+4*q,4)} offset:{jj*3328+q*1024}")
            a(f"ds_write_b32 v{VA4}, v{LL+j} offset:{jj*3328+3072}")
        a("s_waitcnt lgkmcnt(0)")
        a("s_barrier")
        for jj, j in enumerate(keep):
            for q in range(3):
                a(f"ds_read_b128 {vr(SB[jj]+4*q,4)}, v{VB} offset:{jj*3328+q*1024}")
            a(f"ds_read_b32 v{SB[jj]+12}, v{VB4} offset:{jj*3328+3072}")
        a("s_waitcnt lgkmcnt(0)")
        for jj, j in enumerate(keep):
            R = SB[jj]
            a(f"v_sub_f32 v{T0}, v{R+12}, v{LL+j}")
            a(f"v_sub_f32 v{T1}, 0, v{T0}")
            a(f"v_exp_f32 v{T0}, v{T0}")
            a(f"v_exp_f32 v{T1}, v{T1}")
            a("s_nop 0")
            a(f"v_add_f32 v{T0}, 1.0, v{T0}")
            a(f"v_add_f32 v{T1}, 1.0, v{T1}")
            a(f"v_rcp_f32 v{T0}, v{T0}")
            a(f"v_rcp_f32 v{T1}, v{T1}")
            a("s_nop 0")
            for r in range(12):
                a(f"v_mul_f32 v{O[j]+r}, v{O[j]+r}, v{T0}")
                a(f"v_fmac_f32 v{O[j]+r}, v{R+r}, v{T1}")
            for q in range(6):
                a(f"v_cvt_pk_bf16_f32 v{P+q}, v{O[j]+2*q}, v{O[j]+2*q+1}")
            a(f"s_add_u32 s{sT0}, s41, {j*NS_O*1024}")
            a(f"buffer_store_dwordx2 {vr(P,2)}, v{OF0}, {sr(SRDO,4)}, s{sT0} offen")
            a(f"buffer_store_dwordx2 {vr(P+2,2)}, v{OF1}, {sr(SRDO,4)}, s{sT0} offen")
            a(f"s_mov_b64 exec, {sr(sMLO,2)}")
            a(f"buffer_store_dwordx2 {vr(P+4,2)}, v{OF2}, {sr(SRDO,4)}, s{sT0} offen")
            a("s_mov_b64 exec, -1")
            a("s_nop 1")
    finish([0, 1], [2, 3])
    a(f"s_branch {L('fini')}")
    a.label(L('kh1'))
    finish([2, 3], [0, 1])
    a.label(L('fini'))
    if stamps:
        a("s_waitcnt vmcnt(0)")
        stamp(3)
        a.srd(44, 4, 1 << 20, WS_END)
        a(f"s_lshl_b32 s{sT0}, s2, 2")
        a(f"s_add_u32 s{sT0}, s{sT0}, s{sW}")
        a(f"s_lshl_b32 s{sT0}, s{sT0}, 6")
        a(f"v_mov_b32 v{T0}, s{sT0}")
        for i in range(4):
            for q in range(4):
                a(f"v_mov_b32 v{P+q}, s{60+4*i+q}")
            a(f"s_mov_b64 exec, 1")
            a(f"buffer_store_dwordx4 {vr(P,4)}, v{T0}, s[44:47], 0 offen offset:{16*i}")
            a(f"s_mov_b64 exec, -1")
            a("s_nop 1")
        a(f"s_getreg_b32 s{sT1}, hwreg(HW_REG_HW_ID)")
        a(f"s_getreg_b32 s48, hwreg(HW_REG_XCC_ID)")
    a.label(L('end'))
    a("s_endpgm")
    return NV
```

```python
import sys
from asmlib import *
from layout import *
HDR = open("recurrent_scan__mha_block__glu_gated_geglu__prompt.s.ref").read().split("; Override")[0]

def assemble(kernels):
    out = HDR
    for (name, body, vg, grid, block, lds) in kernels:
        out += f"; @launch kernel={name} grid=({grid},1,1) block=({block},1,1) lds={lds}\n"
    out += '.amdgcn_target "amdgcn-amd-amdhsa--gfx950"\n'
    done = set()
    for (name, body, vg, grid, block, lds) in kernels:
        if name in done: continue
        done.add(name)
        out += body
    done = set()
    for (name, body, vg, grid, block, lds) in kernels:
        if name in done: continue
        done.add(name)
        out += kernel_desc(name, vg)
    return out
```

```python
from asmlib import *
from layout import *

STAGE = 32768
DBG = set()

class G32Regs:
    VL = 1
    T = [2, 3, 4, 5, 6, 7]
    AA = 8
    BA = 16
    DA = 20
    DB = 24
    SX, SQ, CS = 28, 29, 30
    SX2, SQ2, CS2 = 44, 45, 46
    EOFF = 48
    XP = 32
    ACC = 64
    FR = 128
    NV = 176

def emit_addr_setup(a, R, sW, sWM, sWN, rowstrideA, rowstrideB, swap_m, swap_n, perm_k, tA, tB, a_frag=False):
    T = R.T
    a(f"v_and_b32 v{T[0]}, 31, v{R.VL}")
    a(f"v_lshrrev_b32 v{T[1]}, 5, v{R.VL}")
    if not a_frag:
        a(f"v_bfe_u32 v{T[2]}, v{T[0]}, 1, 3")
        for s_ in range(4):
            a(f"v_add_u32 v{T[3]}, {2*s_}, v{T[1]}")
            a(f"v_xor_b32 v{T[3]}, v{T[3]}, v{T[2]}")
            a(f"v_lshlrev_b32 v{T[3]}, 4, v{T[3]}")
            a(f"v_lshl_add_u32 v{R.AA+s_}, v{T[0]}, 7, v{T[3]}")
        a(f"s_lshl_b32 s{tA}, s{sWM}, 13")
        if swap_m:
            a(f"s_lshl_b32 s{tB}, s{sWN}, 12")
            a(f"s_add_u32 s{tA}, s{tA}, s{tB}")
        for s_ in range(4):
            a(f"v_add_u32 v{R.AA+s_}, s{tA}, v{R.AA+s_}")
            a(f"v_xor_b32 v{R.AA+4+s_}, 0x1000, v{R.AA+s_}")
    else:
        a(f"v_lshlrev_b32 v{T[3]}, 4, v{R.VL}")
        a(f"s_lshl_b32 s{tA}, s{sWM}, 13")
        for s_ in range(4):
            a(f"v_add_u32 v{R.AA+s_}, s{tA}, v{T[3]}")
            if s_: a(f"v_add_u32 v{R.AA+s_}, {1024*s_}, v{R.AA+s_}")
            a(f"v_xor_b32 v{R.AA+4+s_}, 0x1000, v{R.AA+s_}")
    a(f"v_and_b32 v{T[2]}, 15, v{R.VL}")
    a(f"v_lshrrev_b32 v{T[3]}, 2, v{T[2]}")
    a(f"v_lshl_add_u32 v{T[3]}, v{T[1]}, {2 if perm_k else 3}, v{T[3]}")
    a(f"v_lshlrev_b32 v{T[3]}, 7, v{T[3]}")
    a(f"v_and_b32 v{T[4]}, 3, v{T[2]}")
    a(f"v_lshl_add_u32 v{T[3]}, v{T[4]}, 3, v{T[3]}")
    a(f"v_bfe_u32 v{T[4]}, v{R.VL}, 4, 1")
    a(f"v_lshl_add_u32 v{T[3]}, v{T[4]}, 5, v{T[3]}")
    a(f"v_bfe_u32 v{T[4]}, v{T[2]}, 3, 1")
    a(f"v_lshl_add_u32 v{T[3]}, v{T[4]}, 6, v{T[3]}")
    return T[3]

def emit_dma_setup(a, R, rowstrideA, rowstrideB, a_frag=False):
    T = R.T
    a(f"v_lshrrev_b32 v{T[0]}, 3, v{R.VL}")
    a(f"v_and_b32 v{T[1]}, 7, v{R.VL}")
    a(f"v_lshrrev_b32 v{T[2]}, 4, v{R.VL}")
    if not a_frag:
        for i in range(4):
            a(f"v_add_u32 v{T[3]}, {4*(i&1)}, v{T[2]}")
            a(f"v_xor_b32 v{T[3]}, v{T[3]}, v{T[1]}")
            a(f"v_lshlrev_b32 v{T[3]}, 4, v{T[3]}")
            a(f"v_mul_u32_u24 v{T[4]}, {rowstrideA}, v{T[0]}")
            a(f"v_add_u32 v{T[3]}, v{T[3]}, v{T[4]}")
            a(f"v_add_u32 v{R.DA+i}, {8*i*rowstrideA - 1024*i}, v{T[3]}")
    else:
        a(f"v_lshlrev_b32 v{R.DA}, 4, v{R.VL}")
    a(f"v_and_b32 v{T[3]}, 1, v{T[2]}")
    a(f"v_lshlrev_b32 v{T[3]}, 2, v{T[3]}")
    a(f"v_xor_b32 v{T[3]}, v{T[3]}, v{T[1]}")
    a(f"v_lshlrev_b32 v{T[3]}, 4, v{T[3]}")
    a(f"v_mul_u32_u24 v{T[4]}, {rowstrideB}, v{T[0]}")
    a(f"v_add_u32 v{T[3]}, v{T[3]}, v{T[4]}")
    for i in range(4):
        a(f"v_add_u32 v{R.DB+i}, {8*i*rowstrideB - 1024*i}, v{T[3]}")

def emit_mainloop(a, R, nstage, nb, srdA, srdB, sM0A, sM0B, sOffA, sOffB, stepA, stepB, transposed,
                  stats, perm_k, a_frag, sOnes=None, role='both', rowstats=False):
    def dma_list(stage):
        if "nodma" in DBG or role == 'compute': return []
        buf = stage % nb
        out = [[f"s_add_u32 m0, s{sM0A}, {buf*STAGE}"]]
        for i in range(4):
            va = R.DA + (0 if a_frag else i)
            out[-1].append(f"buffer_load_dwordx4 v{va}, {sr(srdA,4)}, s{sOffA} offen offset:{1024*i} lds") if i == 0 else out.append([f"buffer_load_dwordx4 v{va}, {sr(srdA,4)}, s{sOffA} offen offset:{1024*i} lds"])
        out.append([f"s_add_u32 m0, s{sM0B}, {buf*STAGE}", f"s_add_u32 s{sOffA}, s{sOffA}, {stepA}",
                    f"buffer_load_dwordx4 v{R.DB}, {sr(srdB,4)}, s{sOffB} offen lds"])
        for i in range(1, 4):
            out.append([f"buffer_load_dwordx4 v{R.DB+i}, {sr(srdB,4)}, s{sOffB} offen offset:{1024*i} lds"])
        out[-1].append(f"s_add_u32 s{sOffB}, s{sOffB}, {stepB}")
        return out
    def dma(stage):
        for grp in dma_list(stage):
            for ins in grp: a(ins)
    NF = 3
    def X(p, mi): return R.FR + 16 * p + 4 * mi
    def W(p, ni): return R.FR + 16 * p + 8 + 4 * ni
    cur_base = [0]
    def rebase(st, regs):
        want = (st % nb) * STAGE
        out = []
        if want != cur_base[0]:
            d = want - cur_base[0]
            for r in regs: out.append(f"v_add_u32 v{r}, {hx(d)}, v{r}")
            cur_base[0] = want
        return out
    def read_list(g):
        st, ks = g // 4, g % 4
        p = g % NF
        pre = rebase(st, list(range(R.AA, R.AA + 8)) + [R.BA, R.BA + 1])
        out = []
        for mi in range(2):
            if "noreadA" in DBG: continue
            out.append(f"ds_read_b128 {vr(X(p,mi),4)}, v{R.AA+4*mi+ks}")
        for ni in range(2):
            if "noreadB" in DBG: continue
            for r in range(2):
                off = ks * 2048 + r * (1024 if perm_k else 512)
                out.append(f"ds_read_b64_tr_b16 {vr(W(p,ni)+2*r,2)}, v{R.BA+ni} offset:{off}")
        return pre, out
    npre = min(nb - 2, nstage)
    ng = nstage * 4
    if role in ('loader', 'both'):
        for st in range(npre): dma(st)
    issued = [npre]
    def enter(st):
        outstanding_after = issued[0] - st - 1
        if role != 'compute': a(f"s_waitcnt vmcnt({8*outstanding_after})")
        a("s_barrier")
        if issued[0] < nstage:
            issued[0] += 1
            return dma_list(issued[0] - 1)
        return []
    if role == 'loader':
        T = R.T
        for st in range(nstage):
            groups = enter(st)
            valu = []
            if rowstats and "norowstats" not in DBG:
                for ins in rebase(st, list(range(R.AA, R.AA + 4))): a(ins)
                for ks in range(4): a(f"ds_read_b128 {vr(R.FR+4*ks,4)}, v{R.AA+ks}")
                for r in range(16):
                    src = R.FR + r
                    lo, hi = R.FR + 16 + 2 * (r % 4), R.FR + 17 + 2 * (r % 4)
                    sx, sq = (R.SX, R.SQ) if r % 2 == 0 else (R.SX2, R.SQ2)
                    valu += [f"v_lshlrev_b32 v{lo}, 16, v{src}", f"v_and_b32 v{hi}, 0xffff0000, v{src}",
                             f"v_add_f32 v{sx}, v{sx}, v{lo}", f"v_fmac_f32 v{sq}, v{lo}, v{lo}",
                             f"v_add_f32 v{sx}, v{sx}, v{hi}", f"v_fmac_f32 v{sq}, v{hi}, v{hi}"]
            n = max(len(groups), 1)
            per = (len(valu) + n - 1) // n
            first = True
            for gi in range(n):
                if gi < len(groups):
                    for ins in groups[gi]: a(ins)
                if valu and first:
                    a("s_waitcnt lgkmcnt(0)"); first = False
                for ins in valu[gi*per:(gi+1)*per]: a(ins)
        return
    def mfma(g, k):
        p = g % NF
        mi, ni = k // 2, k % 2
        acc = R.ACC + 32 * mi + 16 * ni
        if "nomfma" in DBG: return
        if transposed: a(f"v_mfma_f32_32x32x16_bf16 {vr(acc,16)}, {vr(W(p,ni),4)}, {vr(X(p,mi),4)}, {vr(acc,16)}")
        else:          a(f"v_mfma_f32_32x32x16_bf16 {vr(acc,16)}, {vr(X(p,mi),4)}, {vr(W(p,ni),4)}, {vr(acc,16)}")
    def colsum(g):
        p = g % NF
        out = []
        if stats and "nostats" not in DBG:
            T = R.T
            for r in range(4):
                src = W(p, 0) + r
                lo, hi = T[2 * (r % 2)], T[2 * (r % 2) + 1]
                cs = R.CS if r % 2 == 0 else R.CS2
                out += [f"v_lshlrev_b32 v{lo}, 16, v{src}", f"v_and_b32 v{hi}, 0xffff0000, v{src}",
                        f"v_add_f32 v{cs}, v{cs}, v{lo}", f"v_add_f32 v{cs}, v{cs}, v{hi}"]
        return out
    pend = enter(0)
    for grp in pend:
        for ins in grp: a(ins)
    for g in (0, 1):
        pre, rd = read_list(g)
        for ins in pre + rd: a(ins)
    for g in range(ng):
        dm = []
        if g + 2 < ng and (g + 2) % 4 == 0:
            dm = enter((g + 2) // 4)
        a(f"s_waitcnt lgkmcnt({6 if g + 1 < ng else 0})")
        pre, rd = ([], [])
        if g + 2 < ng: pre, rd = read_list(g + 2)
        cs = colsum(g)
        fill = [[], [], [], []]
        fill[0] += pre
        for i, ins in enumerate(rd): fill[min(i // 2 + (1 if pre else 0), 3)].append(ins)
        for i, ins in enumerate(cs): fill[i // 4].append(ins)
        for i, grp in enumerate(dm): fill[i // 2] += grp
        for k in range(4):
            mfma(g, k)
            for ins in fill[k]: a(ins)

def emit_stamp_store(a, wsptr, sW, tA, vt, vd, n=4):
    a.srd(52, wsptr, 1 << 20, WS_END)
    a(f"s_lshl_b32 s{tA}, s2, 2")
    a(f"s_add_u32 s{tA}, s{tA}, s{sW}")
    a(f"s_lshl_b32 s{tA}, s{tA}, 6")
    a(f"v_mov_b32 v{vt}, s{tA}")
    for i in range(n):
        for q in range(4): a(f"v_mov_b32 v{vd+q}, s{60+4*i+q}")
        a("s_mov_b64 exec, 1")
        a(f"buffer_store_dwordx4 {vr(vd,4)}, v{vt}, s[52:55], 0 offen offset:{16*i}")
        a("s_mov_b64 exec, -1")
        a("s_nop 1")
```

```python
from gemm32 import *
import math
C1 = -2.0 * math.sqrt(2.0 / math.pi) * LOG2E
C2 = C1 * 0.044715

def gen_gu(a: Asm, name="gu_kernel", nb=3, standalone=True, ntiles=432, wg_expr=None, stamps=False):
    R = G32Regs
    T = R.T
    L = lambda x: f"{name}_{x}"
    SRDA, SRDB, SRDH = 8, 12, 16
    sW, sWM, sWN, sMB, sHB = 28, 29, 30, 31, 32
    sM0A, sM0B, sOffA, sOffB, tA, tB, tC = 33, 34, 35, 36, 38, 39, 40
    FR = R.FR
    if standalone:
        a.raw(kernel_header(name))
        a(f"s_cmp_ge_u32 s2, {ntiles}")
        a(f"s_cbranch_scc1 {L('end')}")
        a(f"s_mov_b32 s50, s2")
    a(f"s_and_b32 s{tA}, s50, 7"); a(f"s_lshr_b32 s{tB}, s50, 3")
    a(f"s_lshl_b32 s{sMB}, s{tA}, 1"); a(f"s_and_b32 s{tC}, s{tB}, 1"); a(f"s_add_u32 s{sMB}, s{sMB}, s{tC}")
    a(f"s_lshr_b32 s{sHB}, s{tB}, 1")
    a(f"s_load_dwordx4 s[4:7], s[0:1], {KA_WG}")
    a(f"s_load_dwordx2 s[44:45], s[0:1], {KA_WS}")
    a(f"v_and_b32 v{R.VL}, 63, v0")
    a(f"v_lshrrev_b32 v{T[0]}, 6, v0")
    a("s_nop 0")
    a(f"v_readfirstlane_b32 s{sW}, v{T[0]}")
    a(f"s_lshr_b32 s{sWM}, s{sW}, 1"); a(f"s_and_b32 s{sWN}, s{sW}, 1")
    bq0 = emit_addr_setup(a, R, sW, sWM, sWN, 0, 3456, False, False, False, tA, tB, a_frag=True)
    a(f"s_lshl_b32 s{tB}, s{sWN}, 6")
    a(f"v_xor_b32 v{R.BA}, s{tB}, v{bq0}")
    a(f"v_add_u32 v{R.BA}, 16384, v{R.BA}")
    a(f"v_add_u32 v{R.BA+1}, 8192, v{R.BA}")
    emit_dma_setup(a, R, 0, 3456, a_frag=True)
    for r in range(64): a(f"v_mov_b32 v{R.ACC+r}, 0")
    a(f"s_lshl_b32 s{sM0A}, s{sW}, 12")
    a(f"s_add_u32 s{sM0B}, s{sM0A}, 16384")
    a(f"s_lshl_b32 s{tA}, s{sMB}, 2"); a(f"s_add_u32 s{tA}, s{tA}, s{sW}")
    a(f"s_mul_i32 s{sOffA}, s{tA}, {40*1024}")
    a(f"s_mul_i32 s{sOffB}, s{sWN}, {32*3456}")
    a(f"s_lshl_b32 s{tA}, s{sHB}, 7"); a(f"s_add_u32 s{sOffB}, s{sOffB}, s{tA}")
    a("s_waitcnt lgkmcnt(0)")
    a(f"s_cmp_ge_u32 s{sW}, 2")
    a("s_cselect_b32 s4, s6, s4"); a("s_cselect_b32 s5, s7, s5")
    a.srd(SRDB, 4, D * 3456); a.srd(SRDA, 44, NT * NS_O * 1024, WS_XN); a.srd(SRDH, 44, NT * NS_H * 1024, WS_H)
    emit_mainloop(a, R, 10, nb, SRDA, SRDB, sM0A, sM0B, sOffA, sOffB, 4096, 64 * 3456, True,
                  False, False, True, None, role='both')
    a("s_nop 15")
    a(f"v_lshlrev_b32 v{T[0]}, 4, v{R.VL}")
    a(f"s_mov_b32 s{tC}, {fhex(C2)}")
    a(f"v_mov_b32 v{T[1]}, {fhex(C1)}")
    for mi in range(2):
        g0, u0 = R.ACC + 32 * mi, R.ACC + 32 * mi + 16
        tmp = FR
        for half in range(2):
            rs = range(8 * half, 8 * half + 8)
            for r in rs: a(f"v_mul_f32 v{tmp+r%8}, v{g0+r}, v{g0+r}")
            for r in rs: a(f"v_fma_f32 v{tmp+r%8}, v{tmp+r%8}, s{tC}, v{T[1]}")
            for r in rs: a(f"v_mul_f32 v{tmp+r%8}, v{tmp+r%8}, v{g0+r}")
            for r in rs: a(f"v_exp_f32 v{tmp+r%8}, v{tmp+r%8}")
            for r in rs: a(f"v_mul_f32 v{u0+r}, v{u0+r}, v{g0+r}")
            for r in rs: a(f"v_add_f32 v{tmp+r%8}, 1.0, v{tmp+r%8}")
            for r in rs: a(f"v_rcp_f32 v{tmp+r%8}, v{tmp+r%8}")
            a("s_nop 0")
            for r in rs: a(f"v_mul_f32 v{u0+r}, v{u0+r}, v{tmp+r%8}")
            for q in range(4): a(f"v_cvt_pk_bf16_f32 v{g0+8*half+q}, v{u0+8*half+2*q}, v{u0+8*half+2*q+1}")
            a(f"s_lshl_b32 s{tA}, s{sMB}, 2"); a(f"s_lshl_b32 s{tB}, s{sWM}, 1"); a(f"s_add_u32 s{tA}, s{tA}, s{tB}")
            a(f"s_add_u32 s{tA}, s{tA}, {mi}"); a(f"s_mul_i32 s{tA}, s{tA}, {NS_H}")
            a(f"s_lshl_b32 s{tB}, s{sHB}, 2"); a(f"s_add_u32 s{tA}, s{tA}, s{tB}")
            a(f"s_lshl_b32 s{tB}, s{sWN}, 1"); a(f"s_add_u32 s{tA}, s{tA}, s{tB}"); a(f"s_add_u32 s{tA}, s{tA}, {half}")
            a(f"s_lshl_b32 s{tA}, s{tA}, 10")
            a(f"buffer_store_dwordx4 {vr(g0+8*half,4)}, v{T[0]}, {sr(SRDH,4)}, s{tA} offen")
    a.label(L('end'))
    if standalone: a("s_endpgm")
    return R.NV
```

```python
from gemm32 import *

def gen_k1(a: Asm, name="k1_kernel", nb=4, stamps=False):
    R = G32Regs
    T = R.T
    L = lambda x: f"{name}_{x}"
    SRDX, SRDW, SRDQ, SRDK, SRDXN = 8, 12, 16, 20, 24
    sW, sWM, sWN, sMB, sCB = 28, 29, 30, 31, 32
    sM0A, sM0B, sOffA, sOffB, sOnes, tA, tB, tC, sScale = 33, 34, 35, 36, 37, 38, 39, 40, 41
    sBLK, sHS, sWF = 46, 47, 48
    FR = R.FR
    SB = (7 % nb) * STAGE
    a.raw(kernel_header(name))
    a("s_cmp_ge_u32 s2, 256")
    a(f"s_cbranch_scc1 {L('end')}")
    a(f"s_and_b32 s{tA}, s2, 7"); a(f"s_lshr_b32 s{tB}, s2, 3")
    a(f"s_and_b32 s{sMB}, s{tA}, 3"); a(f"s_lshl_b32 s{sMB}, s{sMB}, 2")
    a(f"s_and_b32 s{tC}, s{tB}, 3"); a(f"s_add_u32 s{sMB}, s{sMB}, s{tC}")
    a(f"s_lshr_b32 s{sCB}, s{tA}, 2"); a(f"s_lshl_b32 s{sCB}, s{sCB}, 3")
    a(f"s_lshr_b32 s{tC}, s{tB}, 2"); a(f"s_add_u32 s{sCB}, s{sCB}, s{tC}")
    a(f"s_cmp_ge_u32 s{sCB}, 15")
    a(f"s_cbranch_scc1 {L('end')}")
    def stamp(i):
        if stamps:
            a(f"s_memtime s[{60+4*i}:{61+4*i}]")
            a(f"s_memrealtime s[{62+4*i}:{63+4*i}]")
            a("s_waitcnt lgkmcnt(0)")
    stamp(0)
    a(f"s_load_dwordx4 s[4:7], s[0:1], {KA_X}")
    a(f"s_load_dwordx2 s[44:45], s[0:1], {KA_WS}")
    a(f"v_and_b32 v{R.VL}, 63, v0")
    a(f"v_lshrrev_b32 v{T[0]}, 6, v0")
    a("s_nop 0")
    a(f"v_readfirstlane_b32 s{sWF}, v{T[0]}")
    a(f"s_and_b32 s{sW}, s{sWF}, 3")
    a(f"s_lshr_b32 s{sWM}, s{sW}, 1"); a(f"s_and_b32 s{sWN}, s{sW}, 1")
    a(f"s_cmp_ge_u32 s{sWF}, 4")
    a(f"s_cbranch_scc1 {L('loader')}")

    a(f"s_mov_b32 s{sOnes}, 0x3f803f80")
    bq0 = emit_addr_setup(a, R, sW, sWM, sWN, 1280, 3840, True, True, False, tA, tB)
    a(f"s_lshl_b32 s{tA}, s{sWN}, 13"); a(f"s_add_u32 s{tA}, s{tA}, 16384")
    a(f"s_lshl_b32 s{tB}, s{sWM}, 6")
    a(f"v_xor_b32 v{R.BA}, s{tB}, v{bq0}")
    a(f"v_xor_b32 v{R.BA+1}, 64, v{R.BA}")
    a(f"v_add_u32 v{R.BA}, s{tA}, v{R.BA}")
    a(f"v_add_u32 v{R.BA+1}, s{tA}, v{R.BA+1}")
    for r in range(64): a(f"v_mov_b32 v{R.ACC+r}, 0")
    for r in (R.SX, R.SQ, R.CS, R.SX2, R.SQ2, R.CS2): a(f"v_mov_b32 v{r}, 0")
    a(f"s_cmp_ge_u32 s{sCB}, 10")
    a(f"s_cbranch_scc1 {L('vpath')}")

    def ct_s(dst, ni, tmp):
        a(f"s_xor_b32 s{dst}, s{sWM}, {ni}"); a(f"s_lshl_b32 s{tmp}, s{sWN}, 1"); a(f"s_add_u32 s{dst}, s{dst}, s{tmp}")
    def rt_s(dst, mi, tmp):
        a(f"s_xor_b32 s{dst}, s{sWN}, {mi}"); a(f"s_lshl_b32 s{tmp}, s{sWM}, 1"); a(f"s_add_u32 s{dst}, s{dst}, s{tmp}")

    def body(transposed):
        OFF = R.EOFF
        if transposed:
            a(f"s_mov_b32 s{sScale}, 1.0")
            a(f"s_mov_b32 s{sBLK}, {KVBLK}")
            a(f"s_cmp_lt_u32 s{sCB}, 5")
            a(f"s_cselect_b32 s{sScale}, {fhex(QSCALE)}, s{sScale}")
            a(f"s_cselect_b32 s{sBLK}, {QBLK}, s{sBLK}")
            a(f"s_cselect_b32 s{tC}, 0, 5")
            a(f"s_lshl_b32 s{sHS}, s{sBLK}, 6")
            a(f"s_sub_u32 s{tC}, s{sCB}, s{tC}")
            a(f"v_and_b32 v{T[3]}, 31, v{R.VL}")
            a(f"v_lshlrev_b32 v{FR+1}, 3, v{T[3]}")
            a(f"v_add_u32 v{FR+1}, 1024, v{FR+1}")
            a(f"v_lshlrev_b32 v{FR+2}, 4, v{T[3]}")
            a(f"v_lshrrev_b32 v{FR}, 5, v{R.VL}")
            for ni in range(2):
                ct_s(tA, ni, tB)
                a(f"s_lshl_b32 s{tA}, s{tA}, 3"); a(f"s_lshl_b32 s{tB}, s{tC}, 5"); a(f"s_add_u32 s{tA}, s{tA}, s{tB}")
                for j in range(4):
                    a(f"v_add_u32 v{T[0]}, s{tA}, v{FR}")
                    if j: a(f"v_add_u32 v{T[0]}, {2*j}, v{T[0]}")
                    a(f"v_mul_u32_u24 v{T[1]}, 205, v{T[0]}")
                    a(f"v_lshrrev_b32 v{T[1]}, 10, v{T[1]}")
                    a(f"v_mul_u32_u24 v{T[2]}, 5, v{T[1]}")
                    a(f"v_sub_u32 v{T[2]}, v{T[0]}, v{T[2]}")
                    a(f"v_mul_lo_u32 v{T[1]}, v{T[1]}, s{sHS}")
                    a(f"v_cmp_eq_u32 vcc, 4, v{T[2]}")
                    a(f"v_and_b32 v{T[4]}, 1, v{T[2]}")
                    a(f"v_lshl_add_u32 v{T[4]}, v{T[4]}, 9, v{FR+2}")
                    a(f"v_bfe_u32 v{T[5]}, v{T[2]}, 1, 1")
                    a(f"v_lshl_add_u32 v{T[4]}, v{T[5]}, 3, v{T[4]}")
                    a(f"v_cndmask_b32 v{T[4]}, v{T[4]}, v{FR+1}, vcc")
                    a(f"v_add_u32 v{OFF+4*ni+j}, v{T[4]}, v{T[1]}")
        else:
            for ni in range(2):
                ct_s(tA, ni, tB)
                a(f"v_and_b32 v{T[0]}, 31, v{R.VL}")
                a(f"s_sub_u32 s{tB}, s{sCB}, 10"); a(f"s_lshl_b32 s{tB}, s{tB}, 7"); a(f"s_lshl_b32 s{tA}, s{tA}, 5"); a(f"s_add_u32 s{tA}, s{tA}, s{tB}")
                a(f"v_add_u32 v{T[0]}, s{tA}, v{T[0]}")
                a(f"v_mul_u32_u24 v{T[1]}, 3277, v{T[0]}")
                a(f"v_lshrrev_b32 v{T[1]}, 16, v{T[1]}")
                a(f"v_mul_u32_u24 v{T[2]}, 20, v{T[1]}")
                a(f"v_sub_u32 v{T[2]}, v{T[0]}, v{T[2]}")
                a(f"v_mul_u32_u24 v{T[1]}, {64*KVBLK}, v{T[1]}")
                a(f"v_lshl_add_u32 v{T[1]}, v{T[2]}, 4, v{T[1]}")
                a(f"v_lshrrev_b32 v{T[2]}, 5, v{R.VL}")
                a(f"v_mul_u32_u24 v{T[2]}, 320, v{T[2]}")
                a(f"v_add_u32 v{OFF+ni}, v{T[1]}, v{T[2]}")
        a("s_waitcnt lgkmcnt(0)")
        a.srd(SRDQ, 44, NH * NT * QBLK, WS_Q); a.srd(SRDK, 44, NH * NT * KVBLK, WS_KV)
        if transposed:
            a(f"s_cmp_lt_u32 s{sCB}, 5")
            a(f"s_cbranch_scc1 {L('isq')}")
            for r in range(4): a(f"s_mov_b32 s{SRDQ+r}, s{SRDK+r}")
            a.label(L('isq'))
        stamp(1)
        emit_mainloop(a, R, 10, nb, SRDX, SRDW, sM0A, sM0B, sOffA, sOffB, 128, 64 * 3840, transposed,
                      True, False, False, sOnes, role='compute')
        stamp(2)
        a("s_nop 3")
        a(f"v_add_f32 v{R.CS}, v{R.CS}, v{R.CS2}")
        def halfsum(r):
            a(f"v_mov_b32 v{T[0]}, v{r}"); a(f"v_mov_b32 v{T[1]}, v{r}")
            a("s_nop 1")
            a(f"v_permlane32_swap_b32 v{T[0]}, v{T[1]}")
            a("s_nop 1")
            a(f"v_add_f32 v{r}, v{T[0]}, v{T[1]}")
        halfsum(R.CS)
        a(f"v_and_b32 v{T[0]}, 31, v{R.VL}")
        a(f"s_lshl_b32 s{tA}, s{sWN}, 1"); a(f"s_add_u32 s{tA}, s{tA}, s{sWM}"); a(f"s_lshl_b32 s{tA}, s{tA}, 7")
        a(f"s_add_u32 s{tA}, s{tA}, {SB}")
        a(f"v_lshl_add_u32 v{T[1]}, v{T[0]}, 2, s{tA}")
        a(f"ds_write_b32 v{T[1]}, v{R.CS} offset:1024")
        a("s_waitcnt lgkmcnt(0)")
        a("s_barrier")
        if transposed:
            for mi in range(2):
                rt_s(tA, mi, tB)
                a(f"s_lshl_b32 s{tA}, s{tA}, 7"); a(f"s_add_u32 s{tA}, s{tA}, {SB}")
                a(f"v_lshl_add_u32 v{T[1]}, v{T[0]}, 2, s{tA}")
                a(f"ds_read_b32 v{FR+2*mi}, v{T[1]}")
                a(f"ds_read_b32 v{FR+2*mi+1}, v{T[1]} offset:512")
            a(f"v_lshrrev_b32 v{T[2]}, 5, v{R.VL}")
            for ni in range(2):
                ct_s(tA, ni, tB)
                a(f"s_lshl_b32 s{tA}, s{tA}, 7"); a(f"s_add_u32 s{tA}, s{tA}, {SB}")
                a(f"v_lshl_add_u32 v{T[1]}, v{T[2]}, 4, s{tA}")
                for j in range(4):
                    a(f"ds_read_b128 {vr(FR+4+16*ni+4*j,4)}, v{T[1]} offset:{1024+32*j}")
            a("s_waitcnt lgkmcnt(0)")
            for mi in range(2):
                a(f"v_mul_f32 v{FR+2*mi}, s{sScale}, v{FR+2*mi}")
                a(f"v_mul_f32 v{FR+2*mi+1}, s{sScale}, v{FR+2*mi+1}")
            for mi in range(2):
                rt_s(tA, mi, tB)
                a(f"s_lshl_b32 s{tB}, s{sMB}, 2"); a(f"s_add_u32 s{tA}, s{tA}, s{tB}")
                a(f"s_mul_i32 s{tA}, s{tA}, s{sBLK}")
                for ni in range(2):
                    acc = R.ACC + 32 * mi + 16 * ni
                    for j in range(4):
                        for i in range(4):
                            r = acc + 4 * j + i
                            a(f"v_mul_f32 v{r}, v{r}, v{FR+2*mi}")
                        for i in range(4):
                            r = acc + 4 * j + i
                            a(f"v_fmac_f32 v{r}, v{FR+2*mi+1}, v{FR+4+16*ni+4*j+i}")
                        a(f"v_cvt_pk_bf16_f32 v{acc+4*j}, v{acc+4*j}, v{acc+4*j+1}")
                        a(f"v_cvt_pk_bf16_f32 v{acc+4*j+1}, v{acc+4*j+2}, v{acc+4*j+3}")
                        a(f"buffer_store_dwordx2 {vr(acc+4*j,2)}, v{OFF+4*ni+j}, {sr(SRDQ,4)}, s{tA} offen")
        else:
            for ni in range(2):
                ct_s(tA, ni, tB)
                a(f"s_lshl_b32 s{tB}, s{tA}, 7"); a(f"s_add_u32 s{tB}, s{tB}, {SB}")
                a(f"v_lshl_add_u32 v{T[1]}, v{T[0]}, 2, s{tB}")
                a(f"ds_read_b32 v{OFF+2+ni}, v{T[1]} offset:1024")
            for mi in range(2):
                rt_s(tA, mi, tB)
                a(f"s_lshl_b32 s{tB}, s{tA}, 7"); a(f"s_add_u32 s{tB}, s{tB}, {SB}")
                a(f"v_lshrrev_b32 v{T[2]}, 5, v{R.VL}")
                a(f"v_lshl_add_u32 v{T[1]}, v{T[2]}, 4, s{tB}")
                for j in range(4):
                    a(f"ds_read_b128 {vr(FR+4*j,4)}, v{T[1]} offset:{32*j}")
                    a(f"ds_read_b128 {vr(FR+16+4*j,4)}, v{T[1]} offset:{512+32*j}")
                a(f"s_lshl_b32 s{tB}, s{sMB}, 2"); a(f"s_add_u32 s{tA}, s{tA}, s{tB}")
                a(f"s_mul_i32 s{tA}, s{tA}, {KVBLK}")
                a("s_waitcnt lgkmcnt(0)")
                for ni in range(2):
                    acc = R.ACC + 32 * mi + 16 * ni
                    for r in range(16):
                        a(f"v_mul_f32 v{acc+r}, v{acc+r}, v{FR+r}")
                    for r in range(16):
                        a(f"v_fmac_f32 v{acc+r}, v{FR+16+r}, v{OFF+2+ni}")
                    for q in range(8):
                        a(f"v_cvt_pk_bf16_f32 v{acc+q}, v{acc+2*q}, v{acc+2*q+1}")
                    for u in range(2):
                        a(f"buffer_store_dwordx4 {vr(acc+4*u,4)}, v{OFF+ni}, {sr(SRDK,4)}, s{tA} offen offset:{1280+640*u}")
    body(True)
    a(f"s_branch {L('fini')}")
    a.label(L('vpath'))
    body(False)
    a(f"s_branch {L('fini')}")

    a.label(L('loader'))
    emit_dma_setup(a, R, 1280, 3840)
    a(f"v_and_b32 v{T[0]}, 31, v{R.VL}"); a(f"v_lshrrev_b32 v{T[1]}, 5, v{R.VL}")
    a(f"v_bfe_u32 v{T[2]}, v{T[0]}, 1, 3")
    a(f"s_lshl_b32 s{tA}, s{sW}, 12")
    for s_ in range(4):
        a(f"v_add_u32 v{T[3]}, {2*s_}, v{T[1]}")
        a(f"v_xor_b32 v{T[3]}, v{T[3]}, v{T[2]}")
        a(f"v_lshlrev_b32 v{T[3]}, 4, v{T[3]}")
        a(f"v_lshl_add_u32 v{R.AA+s_}, v{T[0]}, 7, v{T[3]}")
        a(f"v_add_u32 v{R.AA+s_}, s{tA}, v{R.AA+s_}")
    for r in (R.SX, R.SQ, R.SX2, R.SQ2): a(f"v_mov_b32 v{r}, 0")
    a(f"s_lshl_b32 s{sM0A}, s{sW}, 12")
    a(f"s_add_u32 s{sM0B}, s{sM0A}, 16384")
    a(f"s_lshl_b32 s{tA}, s{sMB}, 7"); a(f"s_lshl_b32 s{tB}, s{sW}, 5"); a(f"s_add_u32 s{tA}, s{tA}, s{tB}")
    a(f"s_mul_i32 s{sOffA}, s{tA}, 1280")
    a(f"s_mul_i32 s{sOffB}, s{sWN}, {32*3840}")
    a(f"s_lshl_b32 s{tA}, s{sCB}, 8"); a(f"s_add_u32 s{sOffB}, s{sOffB}, s{tA}")
    a(f"s_lshl_b32 s{tA}, s{sWM}, 7"); a(f"s_add_u32 s{sOffB}, s{sOffB}, s{tA}")
    a(f"v_and_b32 v{T[0]}, 31, v{R.VL}"); a(f"v_lshrrev_b32 v{T[1]}, 5, v{R.VL}")
    a(f"v_mul_u32_u24 v{T[0]}, 1280, v{T[0]}")
    a(f"v_lshl_add_u32 v{T[5]}, v{T[1]}, 4, v{T[0]}")
    a(f"s_lshl_b32 s{tC}, s{sCB}, 5"); a(f"s_add_u32 s{tC}, s{sOffA}, s{tC}")
    a("s_waitcnt lgkmcnt(0)")
    a.srd(SRDX, 4, S * D * 2); a.srd(SRDW, 6, D * 3840)
    a.srd(SRDXN, 44, NT * NS_O * 1024, WS_XN)
    stamp(1)
    emit_mainloop(a, R, 10, nb, SRDX, SRDW, sM0A, sM0B, sOffA, sOffB, 128, 64 * 3840, True,
                  False, False, False, None, role='loader', rowstats=True)
    for q in range(3):
        a(f"buffer_load_dwordx4 {vr(R.XP+4*q,4)}, v{T[5]}, {sr(SRDX,4)}, s{tC} offen offset:{q*480}")
    stamp(2)
    a(f"v_add_f32 v{R.SX}, v{R.SX}, v{R.SX2}"); a(f"v_add_f32 v{R.SQ}, v{R.SQ}, v{R.SQ2}")
    for r in (R.SX, R.SQ):
        a(f"v_mov_b32 v{T[0]}, v{r}"); a(f"v_mov_b32 v{T[1]}, v{r}")
        a("s_nop 1")
        a(f"v_permlane32_swap_b32 v{T[0]}, v{T[1]}")
        a("s_nop 1")
        a(f"v_add_f32 v{r}, v{T[0]}, v{T[1]}")
    a(f"v_mul_f32 v{R.SX}, {fhex(1.0/640)}, v{R.SX}")
    a(f"v_mul_f32 v{R.SQ}, {fhex(1.0/640)}, v{R.SQ}")
    a(f"v_fma_f32 v{R.SQ}, -v{R.SX}, v{R.SX}, v{R.SQ}")
    a(f"v_max_f32 v{R.SQ}, 0, v{R.SQ}")
    a(f"v_add_f32 v{R.SQ}, {fhex(1e-5)}, v{R.SQ}")
    a(f"v_rsq_f32 v{T[2]}, v{R.SQ}")
    a(f"v_and_b32 v{T[0]}, 31, v{R.VL}")
    a(f"v_mul_f32 v{T[3]}, v{R.SX}, v{T[2]}")
    a(f"v_sub_f32 v{T[3]}, 0, v{T[3]}")
    a(f"s_lshl_b32 s{tA}, s{sW}, 7"); a(f"s_add_u32 s{tA}, s{tA}, {SB}")
    a(f"v_lshl_add_u32 v{T[1]}, v{T[0]}, 2, s{tA}")
    a(f"ds_write_b32 v{T[1]}, v{T[2]}")
    a(f"ds_write_b32 v{T[1]}, v{T[3]} offset:512")
    a("s_waitcnt lgkmcnt(0)")
    a("s_barrier")
    a(f"s_lshl_b32 s{tA}, s{sMB}, 2"); a(f"s_add_u32 s{tA}, s{tA}, s{sW}")
    a(f"s_mul_i32 s{tA}, s{tA}, 40"); a(f"s_add_u32 s{tA}, s{tA}, s{sCB}"); a(f"s_lshl_b32 s{tA}, s{tA}, 10")
    a(f"v_lshlrev_b32 v{T[4]}, 4, v{R.VL}")
    a("s_waitcnt vmcnt(0) lgkmcnt(0)")
    for q in range(3):
        if q == 2:
            a(f"s_cmp_ge_u32 s{sCB}, 10")
            a(f"s_cbranch_scc1 {L('fini')}")
        for r in range(4):
            src = R.XP + 4 * q + r
            a(f"v_lshlrev_b32 v{T[0]}, 16, v{src}")
            a(f"v_and_b32 v{T[1]}, 0xffff0000, v{src}")
            a(f"v_fma_f32 v{T[0]}, v{T[0]}, v{T[2]}, v{T[3]}")
            a(f"v_fma_f32 v{T[1]}, v{T[1]}, v{T[2]}, v{T[3]}")
            a(f"v_cvt_pk_bf16_f32 v{src}, v{T[0]}, v{T[1]}")
        a(f"s_add_u32 s{tB}, s{tA}, {q*15*1024}")
        a(f"buffer_store_dwordx4 {vr(R.XP+4*q,4)}, v{T[4]}, {sr(SRDXN,4)}, s{tB} offen")
    a.label(L('fini'))
    if stamps:
        a("s_waitcnt vmcnt(0)")
        stamp(3)
        a(f"s_cmp_ge_u32 s{sWF}, 4")
        a(f"s_cbranch_scc1 {L('end')}")
        emit_stamp_store(a, 44, sW, tA, T[0], R.FR)
    a.label(L('end'))
    a("s_endpgm")
    return R.NV
```

```python
from asmlib import *
from layout import *

def gen_k3(a: Asm, name="k3_kernel", stamps=False):
    L = lambda x: f"{name}_{x}"
    VL = 1; T = [2, 3, 4, 5, 6, 7]
    VA = 8
    VB = 9
    VR = 14
    ACC = 16
    NSTG = 3
    AF = 96
    WF = 144
    NV = 192
    SRDA, SRDB, SRDX, SRDO = 8, 12, 16, 20
    sW, sRB, sCBk, sOffA, sOffB, sM0, tA, tB, tC, sN = 28, 29, 30, 31, 32, 33, 34, 35, 36, 37
    NBUF = 4
    WLDS = NBUF * 5120
    a.raw(kernel_header(name))
    a("s_cmp_ge_u32 s2, 256")
    a(f"s_cbranch_scc1 {L('end')}")
    a(f"s_and_b32 s{tA}, s2, 7"); a(f"s_lshr_b32 s{tB}, s2, 3")
    a(f"s_lshl_b32 s{sRB}, s{tA}, 2"); a(f"s_and_b32 s{tC}, s{tB}, 3"); a(f"s_add_u32 s{sRB}, s{sRB}, s{tC}")
    a(f"s_lshr_b32 s{sCBk}, s{tB}, 2")
    a(f"s_load_dwordx2 s[4:5], s[0:1], {KA_WO}")
    a(f"s_load_dwordx2 s[6:7], s[0:1], {KA_WD}")
    a(f"s_load_dwordx2 s[44:45], s[0:1], {KA_WS}")
    a(f"s_load_dwordx2 s[46:47], s[0:1], {KA_X}")
    a(f"s_load_dwordx2 s[48:49], s[0:1], {KA_OUT}")
    a(f"v_and_b32 v{VL}, 63, v0")
    a(f"v_lshrrev_b32 v{T[0]}, 6, v0")
    a("s_nop 0")
    a(f"v_readfirstlane_b32 s{sW}, v{T[0]}")
    a(f"v_and_b32 v{T[0]}, 15, v{VL}"); a(f"v_lshrrev_b32 v{T[1]}, 4, v{VL}")
    a(f"v_lshlrev_b32 v{VA}, 4, v{T[0]}")
    a(f"v_lshl_add_u32 v{VA}, v{T[1]}, 9, v{VA}")
    for i in range(5):
        a(f"v_add_u32 v{T[2]}, {64*i}, v{VL}")
        a(f"v_mul_u32_u24 v{T[3]}, 6554, v{T[2]}")
        a(f"v_lshrrev_b32 v{T[3]}, 16, v{T[3]}")
        a(f"v_mul_u32_u24 v{T[4]}, 10, v{T[3]}")
        a(f"v_sub_u32 v{T[4]}, v{T[2]}, v{T[4]}")
        a(f"v_mul_u32_u24 v{T[3]}, 1280, v{T[3]}")
        a(f"v_lshl_add_u32 v{T[3]}, v{T[4]}, 4, v{T[3]}")
        a(f"v_subrev_u32 v{VB+i}, {1024*(i%4)}, v{T[3]}")
        a(f"v_add_u32 v{VB+i}, 4096, v{VB+i}")
    a(f"v_lshrrev_b32 v{T[2]}, 1, v{T[1]}"); a(f"v_lshlrev_b32 v{T[2]}, 4, v{T[2]}")
    a(f"v_and_b32 v{T[3]}, 1, v{T[1]}"); a(f"v_lshl_add_u32 v{T[2]}, v{T[3]}, 2, v{T[2]}")
    a(f"v_lshrrev_b32 v{T[3]}, 2, v{T[0]}"); a(f"v_add_u32 v{T[2]}, v{T[2]}, v{T[3]}")
    a(f"v_mul_u32_u24 v{T[2]}, 160, v{T[2]}")
    a(f"v_and_b32 v{T[3]}, 3, v{T[0]}"); a(f"v_lshl_add_u32 v{VR}, v{T[3]}, 3, v{T[2]}")
    a(f"s_mul_i32 s{sM0}, s{sW}, {WLDS}")
    a(f"v_add_u32 v{VR}, s{sM0}, v{VR}")
    for r in range(80): a(f"v_mov_b32 v{ACC+r}, 0")
    a("s_waitcnt lgkmcnt(0)")
    a(f"s_cmp_eq_u32 s{sW}, 0")
    a(f"s_cbranch_scc1 {L('w0')}")
    a.srd(SRDA, 44, NT * NS_H * 1024, WS_H)
    a(f"s_sub_u32 s4, s6, 4096"); a("s_subb_u32 s5, s7, 0")
    a.srd(SRDB, 4, DF * 1280 + 4096)
    a(f"s_sub_u32 s{tA}, s{sW}, 1"); a(f"s_mul_i32 s{tA}, s{tA}, 18")
    a(f"s_lshl_b32 s{tB}, s{sRB}, 1"); a(f"s_mul_i32 s{tB}, s{tB}, {NS_H}")
    a(f"s_lshl_b32 s{tC}, s{tA}, 1"); a(f"s_add_u32 s{tB}, s{tB}, s{tC}"); a(f"s_lshl_b32 s{sOffA}, s{tB}, 10")
    a(f"s_mul_i32 s{sOffB}, s{tA}, {32*1280}")
    a(f"s_mov_b32 s{sN}, {NS_H*1024}")
    a(f"s_branch {L('go')}")
    a.label(L('w0'))
    a.srd(SRDA, 44, NT * NS_O * 1024, WS_O)
    a(f"s_sub_u32 s4, s4, 4096"); a("s_subb_u32 s5, s5, 0")
    a.srd(SRDB, 4, D * 1280 + 4096)
    a(f"s_lshl_b32 s{tB}, s{sRB}, 1"); a(f"s_mul_i32 s{tB}, s{tB}, {NS_O}"); a(f"s_lshl_b32 s{sOffA}, s{tB}, 10")
    a(f"s_mov_b32 s{sOffB}, 0")
    a(f"s_mov_b32 s{sN}, {NS_O*1024}")
    a.label(L('go'))
    a(f"s_mul_i32 s{tA}, s{sCBk}, 160"); a(f"s_add_u32 s{sOffB}, s{sOffB}, s{tA}")
    sOffA2 = 38
    a(f"s_add_u32 s{sOffA2}, s{sOffA}, s{sN}")
    def issue(st):
        p = st % NSTG
        for mt in range(4):
            so = sOffA if mt < 2 else sOffA2
            a(f"buffer_load_dwordx4 {vr(AF+16*p+4*mt,4)}, v{VA}, {sr(SRDA,4)}, s{so} offen offset:{(mt&1)*256}")
        a(f"s_add_u32 m0, s{sM0}, {(st % NBUF)*5120}")
        for i in range(4):
            a(f"buffer_load_dwordx4 v{VB+i}, {sr(SRDB,4)}, s{sOffB} offen offset:{1024*i} lds")
        a(f"s_add_u32 m0, s{sM0}, {(st % NBUF)*5120 + 4096}")
        a(f"s_add_u32 s{sOffA}, s{sOffA}, 2048"); a(f"s_add_u32 s{sOffA2}, s{sOffA2}, 2048")
        a(f"buffer_load_dwordx4 v{VB+4}, {sr(SRDB,4)}, s{sOffB} offen lds")
        a(f"s_add_u32 s{sOffB}, s{sOffB}, {32*1280}")
    def compute(st):
        p = st % NSTG
        base = (st % NBUF) * 5120
        wp = st & 1
        for nt in range(5):
            for r in range(2):
                a(f"ds_read_b64_tr_b16 {vr(WF+20*wp+4*nt+2*r,2)}, v{VR} offset:{base + r*1280 + nt*32}")
        for nt in range(5):
            a(f"s_waitcnt lgkmcnt({2*(4-nt)})")
            for mt in range(4):
                acc = ACC + 4 * (5 * mt + nt)
                a(f"v_mfma_f32_16x16x32_bf16 {vr(acc,4)}, {vr(WF+20*wp+4*nt,4)}, {vr(AF+16*p+4*mt,4)}, {vr(acc,4)}")
    def run(nsteps, tag):
        PRE = 2
        for st in range(min(PRE, nsteps)): issue(st)
        for st in range(nsteps):
            if st + PRE < nsteps:
                issue(st + PRE)
                a(f"s_waitcnt vmcnt({9*PRE})")
            else:
                a(f"s_waitcnt vmcnt({9*(nsteps-1-st)})")
            compute(st)
    a(f"s_cmp_eq_u32 s{sW}, 0")
    a(f"s_cbranch_scc1 {L('run20')}")
    run(18, 'a')
    a(f"s_branch {L('red')}")
    a.label(L('run20'))
    run(20, 'b')
    a.label(L('red'))
    a("s_nop 7")
    a("s_barrier")
    a(f"v_lshlrev_b32 v{T[0]}, 4, v{VL}")
    a(f"s_mul_i32 s{tA}, s{sW}, 20480")
    a(f"v_add_u32 v{T[1]}, s{tA}, v{T[0]}")
    for q in range(20):
        a(f"ds_write_b128 v{T[1]}, {vr(ACC+4*q,4)} offset:{q*1024}")
    a("s_waitcnt lgkmcnt(0)")
    a("s_barrier")
    a(f"s_mul_i32 s{tA}, s{sW}, 5120")
    a(f"v_add_u32 v{T[1]}, s{tA}, v{T[0]}")
    for src in range(4):
        a(f"v_add_u32 v{T[2]+0}, {src*20480}, v{T[1]}")
        for nt in range(5):
            a(f"ds_read_b128 {vr(ACC+20*src+4*nt,4)}, v{T[2]} offset:{nt*1024}")
    a.srd(SRDX, 46, S * D * 2); a.srd(SRDO, 48, S * D * 2)
    a(f"v_and_b32 v{T[3]}, 15, v{VL}"); a(f"v_lshrrev_b32 v{T[4]}, 4, v{VL}")
    a(f"v_mul_u32_u24 v{T[3]}, 1280, v{T[3]}")
    a(f"v_lshl_add_u32 v{T[3]}, v{T[4]}, 3, v{T[3]}")
    a(f"s_lshl_b32 s{tA}, s{sRB}, 6"); a(f"s_lshl_b32 s{tB}, s{sW}, 4"); a(f"s_add_u32 s{tA}, s{tA}, s{tB}")
    a(f"s_mul_i32 s{tA}, s{tA}, 1280"); a(f"s_mul_i32 s{tB}, s{sCBk}, 160"); a(f"s_add_u32 s{tA}, s{tA}, s{tB}")
    XR = AF
    for nt in range(5):
        a(f"buffer_load_dwordx2 {vr(XR+2*nt,2)}, v{T[3]}, {sr(SRDX,4)}, s{tA} offen offset:{nt*32}")
    a("s_waitcnt lgkmcnt(0)")
    for r in range(20):
        a(f"v_add_f32 v{ACC+20+r}, v{ACC+20+r}, v{ACC+40+r}")
    for r in range(20):
        a(f"v_add_f32 v{ACC+20+r}, v{ACC+20+r}, v{ACC+60+r}")
    a(f"s_mov_b32 s{tC}, {fhex(-LOG2E)}")
    for r in range(20): a(f"v_mul_f32 v{ACC+40+r}, s{tC}, v{ACC+20+r}")
    for r in range(20): a(f"v_exp_f32 v{ACC+40+r}, v{ACC+40+r}")
    a("s_nop 0")
    for r in range(20): a(f"v_add_f32 v{ACC+40+r}, 1.0, v{ACC+40+r}")
    for r in range(20): a(f"v_rcp_f32 v{ACC+40+r}, v{ACC+40+r}")
    a("s_nop 0")
    for r in range(20): a(f"v_mul_f32 v{ACC+20+r}, v{ACC+20+r}, v{ACC+40+r}")
    a("s_waitcnt vmcnt(0)")
    for nt in range(5):
        for q in range(2):
            a(f"v_lshlrev_b32 v{T[0]}, 16, v{XR+2*nt+q}")
            a(f"v_and_b32 v{T[1]}, 0xffff0000, v{XR+2*nt+q}")
            r = 4 * nt + 2 * q
            a(f"v_fma_f32 v{T[0]}, v{ACC+r}, v{ACC+20+r}, v{T[0]}")
            a(f"v_fma_f32 v{T[1]}, v{ACC+r+1}, v{ACC+20+r+1}, v{T[1]}")
            a(f"v_cvt_pk_bf16_f32 v{XR+2*nt+q}, v{T[0]}, v{T[1]}")
        a(f"buffer_store_dwordx2 {vr(XR+2*nt,2)}, v{T[3]}, {sr(SRDO,4)}, s{tA} offen offset:{nt*32}")
    a.label(L('end'))
    a("s_endpgm")
    return NV, max(4 * WLDS, 4 * 20480)
```

```python
S, D, NH, DH, DF = 2048, 640, 32, 20, 1728
NT = S // 32
QBLK = 1280
KVBLK = 2560
WS_Q  = 0
WS_KV = WS_Q + NH * NT * QBLK
WS_H  = WS_KV + NH * NT * KVBLK
NS_H = DF // 16
WS_O  = WS_H + NT * NS_H * 1024
NS_O = D // 16
WS_XN = WS_O + NT * NS_O * 1024
WS_G  = WS_XN + NT * NS_O * 1024
WS_FLAG = WS_G + 256 * 20480
WS_END = WS_FLAG + 4096
KA_X, KA_WQKV, KA_WO, KA_BX, KA_WG, KA_WU, KA_WD, KA_OUT, KA_DBG, KA_WS = [8 * i for i in range(10)]
LOG2E = 1.4426950408889634
QSCALE = (DH ** -0.5) * LOG2E
```

```python
from build import *
from k1 import gen_k1
from attn import gen_attn
from gu import gen_gu
from k3 import gen_k3
import sys
ks = []
a = Asm(); nv = gen_k1(a, "k1_kernel", nb=5); ks.append(("k1_kernel", a.text(), nv, 256, 512, 5*32768))
a = Asm(); nv = gen_attn(a, "attn_kernel"); ks.append(("attn_kernel", a.text(), nv, 256, 256, 26624))
a = Asm(); nv = gen_gu(a, "gu_kernel", nb=3); ks.append(("gu_kernel", a.text(), nv, 432, 256, 3*32768))
a = Asm(); nv, lds = gen_k3(a, "k3_kernel"); ks.append(("k3_kernel", a.text(), nv, 256, 256, lds))
open(sys.argv[1], "w").write(assemble(ks))
```

```python
from asmlib import *
from layout import *

BIAS = 90.0

class Attn:
    VL, VK1, VK2, VV = 1, 176, 177, 178
    T0, T1, T2 = 179, 180, 181
    M = 182
    Q1 = 16
    Q2 = 32
    P = 40
    SB = [48, 64]
    O = [80 + 16 * j for j in range(4)]
    K1 = [144, 186, 198, 210]
    TA = 186
    def __init__(self, a, name, sW, xbase, flagbase, guard, stamps=None, force_slow=False):
        self.a, self.name, self.sW = a, name, sW
        self.xbase, self.flagbase, self.guard = xbase, flagbase, guard
        self.stamp = stamps if stamps else (lambda i: None)
        self.force_slow = force_slow
        self.K1 = [188 + 12 * b for b in range(4)]
        self.V0 = [192 + 12 * b for b in range(4)]
        self.V1 = [196 + 12 * b for b in range(4)]
        self.K2 = [144 + 2 * b for b in range(4)]
        self.TA = 152
        self.NV = 236
        self.SRDQ, self.SRDK, self.SRDO = 76, 80, 84
        (self.sHEAD, self.sQB, self.sQH, self.sKH, self.sKOFF, self.sCNT) = 88, 89, 90, 91, 92, 93
        self.sMLO, self.sMV, self.sMHI = 94, 96, 98
        self.sT0, self.sT1, self.sBAD, self.sQOFF, self.sKSAVE, self.sOB = 58, 59, 100, 56, 57, 55
    def L(self, x): return f"{self.name}_{x}"

    def setup(self, wsptr):
        a, s_ = self.a, self
        T0, T1, T2 = s_.T0, s_.T1, s_.T2
        a(f"s_and_b32 s{s_.sHEAD}, s2, 7"); a(f"s_lshl_b32 s{s_.sHEAD}, s{s_.sHEAD}, 2")
        a(f"s_lshr_b32 s{s_.sT0}, s2, 3"); a(f"s_and_b32 s{s_.sT0}, s{s_.sT0}, 3"); a(f"s_add_u32 s{s_.sHEAD}, s{s_.sHEAD}, s{s_.sT0}")
        a(f"s_lshr_b32 s{s_.sQB}, s2, 5")
        a(f"s_and_b32 s{s_.sQH}, s{s_.sW}, 1"); a(f"s_lshr_b32 s{s_.sKH}, s{s_.sW}, 1")
        a(f"s_mov_b32 s{s_.sMLO}, -1"); a(f"s_mov_b32 s{s_.sMLO+1}, 0")
        a(f"s_mov_b32 s{s_.sMV}, 0xfffff"); a(f"s_mov_b32 s{s_.sMV+1}, 0xfffff")
        a(f"s_mov_b32 s{s_.sMHI}, 0"); a(f"s_mov_b32 s{s_.sMHI+1}, -1")
        a(f"v_lshlrev_b32 v{s_.VK1}, 4, v{s_.VL}")
        a(f"v_and_b32 v{T0}, 31, v{s_.VL}")
        a(f"v_lshlrev_b32 v{s_.VK2}, 3, v{T0}")
        a(f"v_lshrrev_b32 v{T1}, 5, v{s_.VL}")
        a(f"v_mul_u32_u24 v{T1}, 320, v{T1}")
        a(f"v_lshl_add_u32 v{s_.VV}, v{T0}, 4, v{T1}")
        a(f"v_mov_b32 v{T2}, 0x3f803f80")
        a(f"v_cmp_eq_u32 vcc, 20, v{T0}")
        a(f"v_mov_b32 v{T1}, 0")
        a("s_nop 0")
        a(f"v_cndmask_b32 v{T1}, v{T1}, v{T2}, vcc")
        for b in range(4):
            for r in range(4):
                a(f"v_mov_b32 v{s_.V0[b]+r}, v{T1}"); a(f"v_mov_b32 v{s_.V1[b]+r}, v{T1}")
            a(f"v_mov_b32 v{s_.K2[b]}, v{T2}"); a(f"v_mov_b32 v{s_.K2[b]+1}, 0")
        for j in range(4):
            a(f"v_mov_b32 v{s_.Q2+2*j}, 0"); a(f"v_mov_b32 v{s_.Q2+2*j+1}, 0")
        for r in range(8): a(f"v_mov_b32 v{s_.P+r}, 0")
        a.srd(s_.SRDQ, wsptr, NH * NT * QBLK, WS_Q)
        a.srd(s_.SRDK, wsptr, NH * NT * KVBLK + 8 * KVBLK, WS_KV)
        a.srd(s_.SRDO, wsptr, NT * NS_O * 1024, WS_O)
        a(f"s_lshl_b32 s{s_.sT0}, s{s_.sHEAD}, 6"); a(f"s_lshl_b32 s{s_.sT1}, s{s_.sQB}, 3"); a(f"s_add_u32 s{s_.sT0}, s{s_.sT0}, s{s_.sT1}")
        a(f"s_lshl_b32 s{s_.sT1}, s{s_.sQH}, 2"); a(f"s_add_u32 s{s_.sT0}, s{s_.sT0}, s{s_.sT1}")
        a(f"s_mul_i32 s{s_.sQOFF}, s{s_.sT0}, {QBLK}")
        a(f"s_lshl_b32 s{s_.sT0}, s{s_.sHEAD}, 6"); a(f"s_lshl_b32 s{s_.sT1}, s{s_.sKH}, 5"); a(f"s_add_u32 s{s_.sT0}, s{s_.sT0}, s{s_.sT1}")
        a(f"s_mul_i32 s{s_.sKOFF}, s{s_.sT0}, {KVBLK}")
        a(f"s_mov_b32 s{s_.sKSAVE}, s{s_.sKOFF}")

    def load_q(self):
        a, s_ = self.a, self
        for j in range(4):
            a(f"s_add_u32 s{s_.sT0}, s{s_.sQOFF}, {j*QBLK}")
            a(f"buffer_load_dwordx4 {vr(s_.Q1+4*j,4)}, v{s_.VK1}, {sr(s_.SRDQ,4)}, s{s_.sT0} offen")
        a(f"s_mov_b64 exec, {sr(s_.sMLO,2)}")
        for j in range(4):
            a(f"s_add_u32 s{s_.sT0}, s{s_.sQOFF}, {j*QBLK}")
            a(f"buffer_load_dwordx2 {vr(s_.Q2+2*j,2)}, v{s_.VK2}, {sr(s_.SRDQ,4)}, s{s_.sT0} offen offset:1024")
        a("s_mov_b64 exec, -1")
    def load_kv(self, b):
        a, s_ = self.a, self
        a(f"buffer_load_dwordx4 {vr(s_.K1[b],4)}, v{s_.VK1}, {sr(s_.SRDK,4)}, s{s_.sKOFF} offen")
        a(f"s_mov_b64 exec, {sr(s_.sMLO,2)}")
        a(f"buffer_load_dwordx2 {vr(s_.K2[b],2)}, v{s_.VK2}, {sr(s_.SRDK,4)}, s{s_.sKOFF} offen offset:1024")
        a(f"s_mov_b64 exec, {sr(s_.sMV,2)}")
        a(f"buffer_load_dwordx4 {vr(s_.V0[b],4)}, v{s_.VV}, {sr(s_.SRDK,4)}, s{s_.sKOFF} offen offset:1280")
        a(f"buffer_load_dwordx4 {vr(s_.V1[b],4)}, v{s_.VV}, {sr(s_.SRDK,4)}, s{s_.sKOFF} offen offset:1920")
        a("s_mov_b64 exec, -1")
        a(f"s_add_u32 s{s_.sKOFF}, s{s_.sKOFF}, {KVBLK}")
    def first_loads(self):
        self.load_q(); self.load_kv(0); self.load_kv(1); self.load_kv(2)
    def qk1(self, D, b, j): self.a(f"v_mfma_f32_32x32x16_bf16 {vr(D,16)}, {vr(self.K1[b],4)}, {vr(self.Q1+4*j,4)}, 0")
    def qk2(self, D, b, j): self.a(f"v_mfma_f32_32x32x8bf16_1k {vr(D,16)}, {vr(self.K2[b],2)}, {vr(self.Q2+2*j,2)}, {vr(D,16)}")
    def pv(self, u, b, j):
        V = self.V0[b] if u == 0 else self.V1[b]
        self.a(f"v_mfma_f32_32x32x16_bf16 {vr(self.O[j],16)}, {vr(V,4)}, {vr(self.P+4*u,4)}, {vr(self.O[j],16)}")
    def crosshalf(self, r, op):
        a, T1, T2 = self.a, self.T1, self.T2
        a(f"v_mov_b32 v{T1}, v{r}"); a(f"v_mov_b32 v{T2}, v{r}")
        a("s_nop 1")
        a(f"v_permlane32_swap_b32 v{T1}, v{T2}")
        a("s_nop 1")
        a(f"{op} v{r}, v{T1}, v{T2}")

    def maxphase(self, part=None):
        a, s_ = self.a, self
        T0, T1, T2 = s_.T0, s_.T1, s_.T2
        mx = [s_.TA + j for j in range(4)]
        for rnd in (range(2) if part in (None, 0) else []):
            for j in range(4): s_.qk1(s_.O[j], rnd, j)
            for j in range(4): s_.qk2(s_.O[j], rnd, j)
            a("s_nop 15")
            for j in range(4):
                vals = [s_.O[j] + i for i in range(16)]
                if rnd == 0:
                    a(f"v_max3_f32 v{mx[j]}, v{vals[0]}, v{vals[1]}, v{vals[2]}"); k = 3
                else:
                    k = 0
                while k < 16:
                    b2 = vals[k + 1] if k + 1 < 16 else vals[k]
                    a(f"v_max3_f32 v{mx[j]}, v{mx[j]}, v{vals[k]}, v{b2}")
                    k += 2
        if part == 0: return
        for j in range(4):
            a(f"v_mov_b32 v{T0}, v{mx[j]}")
            s_.crosshalf(T0, "v_max_f32")
            a(f"v_add_f32 v{T0}, {fhex(BIAS)}, v{T0}")
            a(f"v_sub_f32 v{T0}, 0, v{T0}")
            a(f"v_cvt_pk_bf16_f32 v{T1}, v{T0}, v{T0}")
            a(f"v_lshlrev_b32 v{T1}, 16, v{T1}")
            a(f"v_sub_f32 v{T2}, v{T0}, v{T1}")
            a(f"v_cvt_pk_bf16_f32 v{T2}, v{T0}, v{T2}")
            a(f"v_and_b32 v{T0}, 0xffff0000, v{T2}")
            a(f"v_add_f32 v{T0}, v{T0}, v{T1}")
            a(f"v_sub_f32 v{s_.M+j}, 0, v{T0}")
            a(f"s_mov_b64 exec, {sr(s_.sMHI,2)}")
            a(f"v_mov_b32 v{s_.Q2+2*j}, v{T2}")
            a("s_mov_b64 exec, -1")
        for j in range(4):
            for r in range(16): a(f"v_mov_b32 v{s_.O[j]+r}, 0")
        s_.qk1(s_.SB[0], 0, 0); s_.qk2(s_.SB[0], 0, 0)

    def main(self):
        a, s_ = self.a, self
        L = s_.L
        T0, T1, T2 = s_.T0, s_.T1, s_.T2
        SB, P, O, M, TA = s_.SB, s_.P, s_.O, s_.M, s_.TA
        sCNT, sT0, sT1, sBAD = s_.sCNT, s_.sT0, s_.sT1, s_.sBAD
        if s_.force_slow: a(f"s_branch {L('offs')}")
        s_.stamp(1)
        a("s_nop 7")
        a(f"s_mov_b32 s{sCNT}, 8")
        a(".p2align 6")
        a.label(L('loop'))
        def e(sb, i): a(f"v_exp_f32 v{SB[sb]+i}, v{SB[sb]+i}")
        def c(sb, i): a(f"v_cvt_pk_bf16_f32 v{P+i}, v{SB[sb]+2*i}, v{SB[sb]+2*i+1}")
        for n in range(16):
            t, j = n // 4, n % 4
            tn, jn = ((n + 1) // 4) % 4, (n + 1) % 4
            tp, jp = ((n - 1) // 4) % 4, (n - 1) % 4
            cur, nxt = n & 1, (n + 1) & 1
            if j == 3: a("s_waitcnt vmcnt(8)")
            s_.qk1(SB[nxt], tn, jn)
            if j == 1: s_.load_kv((t + 3) % 4)
            for i in range(0, 4): e(cur, i)
            c(cur, 0); c(cur, 1)
            s_.qk2(SB[nxt], tn, jn)
            for i in range(4, 8): e(cur, i)
            c(cur, 2); c(cur, 3)
            s_.pv(1, tp, jp)
            for i in range(8, 12): e(cur, i)
            c(cur, 4); c(cur, 5)
            s_.pv(0, t, j)
            for i in range(12, 16): e(cur, i)
            c(cur, 6); c(cur, 7)
        a(f"s_sub_u32 s{sCNT}, s{sCNT}, 1")
        a(f"s_cmp_lg_u32 s{sCNT}, 0")
        a(f"s_cbranch_scc1 {L('loop')}")
        a("s_nop 1")
        s_.pv(1, 3, 3)
        a.label(L('offs'))
        OF0, OF1, OF2 = s_.Q1, s_.Q1 + 1, s_.Q1 + 2
        VA, VB, VA4, VB4 = TA + 8, TA + 9, TA + 10, TA + 11
        a(f"s_mul_i32 s{sT0}, s{s_.sW}, 6656"); a(f"s_xor_b32 s{sT1}, s{s_.sW}, 2"); a(f"s_mul_i32 s{sT1}, s{sT1}, 6656")
        if s_.xbase:
            a(f"s_add_u32 s{sT0}, s{sT0}, {s_.xbase}"); a(f"s_add_u32 s{sT1}, s{sT1}, {s_.xbase}")
        a(f"v_lshlrev_b32 v{VA}, 4, v{s_.VL}"); a(f"v_add_u32 v{VB}, s{sT1}, v{VA}"); a(f"v_add_u32 v{VA}, s{sT0}, v{VA}")
        a(f"v_lshlrev_b32 v{VA4}, 2, v{s_.VL}"); a(f"v_add_u32 v{VB4}, s{sT1}, v{VA4}"); a(f"v_add_u32 v{VA4}, s{sT0}, v{VA4}")
        a(f"s_mul_i32 s{sT0}, s{s_.sHEAD}, 5")
        a(f"v_lshrrev_b32 v{T0}, 5, v{s_.VL}"); a(f"v_and_b32 v{T1}, 31, v{s_.VL}"); a(f"v_lshlrev_b32 v{T1}, 4, v{T1}")
        for idx, (dst, add) in enumerate(((OF0, 0), (OF1, 2), (OF2, 4))):
            if idx < 2:
                a(f"v_add_u32 v{T2}, s{sT0}, v{T0}")
                if add: a(f"v_add_u32 v{T2}, {add}, v{T2}")
            else:
                a(f"v_mov_b32 v{T2}, s{sT0}"); a(f"v_add_u32 v{T2}, {add}, v{T2}")
            a(f"v_lshrrev_b32 v{dst}, 2, v{T2}"); a(f"v_lshlrev_b32 v{dst}, 10, v{dst}")
            a(f"v_and_b32 v{s_.Q1+3}, 1, v{T2}"); a(f"v_lshl_add_u32 v{dst}, v{s_.Q1+3}, 9, v{dst}")
            a(f"v_bfe_u32 v{s_.Q1+3}, v{T2}, 1, 1"); a(f"v_lshl_add_u32 v{dst}, v{s_.Q1+3}, 3, v{dst}")
            a(f"v_add_u32 v{dst}, v{dst}, v{T1}")
        a(f"s_lshl_b32 s{sT0}, s{s_.sQB}, 3"); a(f"s_lshl_b32 s{sT1}, s{s_.sQH}, 2"); a(f"s_add_u32 s{sT0}, s{sT0}, s{sT1}")
        a(f"s_mul_i32 s{s_.sOB}, s{sT0}, {NS_O*1024}")
        s_.stamp(2)
        if s_.force_slow: a(f"s_branch {L('slow')}")
        LREG = TA
        def get_l(j):
            a(f"v_mov_b32 v{T1}, v{O[j]+8}"); a(f"v_mov_b32 v{LREG+j}, v{O[j]+8}")
            a("s_nop 1")
            a(f"v_permlane32_swap_b32 v{T1}, v{LREG+j}")
        for j in range(4): get_l(j)
        U = TA + 4
        for j in range(4): a(f"v_mul_f32 v{U+j}, 0, v{O[j]}")
        for r in range(1, 12):
            for j in range(4): a(f"v_fmac_f32 v{U+j}, 0, v{O[j]+r}")
        a(f"v_add_f32 v{U}, v{U}, v{U+1}"); a(f"v_add_f32 v{U+2}, v{U+2}, v{U+3}"); a(f"v_add_f32 v{U}, v{U}, v{U+2}")
        a(f"v_min3_f32 v{T0}, v{LREG}, v{LREG+1}, v{LREG+2}"); a(f"v_min_f32 v{T0}, v{T0}, v{LREG+3}")
        a(f"v_max3_f32 v{T1}, v{LREG}, v{LREG+1}, v{LREG+2}"); a(f"v_max_f32 v{T1}, v{T1}, v{LREG+3}")
        a(f"v_cmp_u_f32 vcc, v{U}, v{U}")
        a(f"s_mov_b64 {sr(sBAD,2)}, vcc")
        a(f"v_mov_b32 v{T2}, {fhex(2.0**120)}")
        a(f"v_cmp_nlt_f32 vcc, v{T1}, v{T2}")
        a(f"s_or_b64 {sr(sBAD,2)}, {sr(sBAD,2)}, vcc")
        a(f"v_mov_b32 v{T2}, {fhex(2.0**-120)}")
        a(f"v_cmp_ngt_f32 vcc, v{T0}, v{T2}")
        a(f"s_or_b64 {sr(sBAD,2)}, {sr(sBAD,2)}, vcc")
        a(f"s_cmp_eq_u64 {sr(sBAD,2)}, 0")
        a(f"s_cbranch_scc1 {L('fin')}")
        a.label(L('slow'))
        a("s_waitcnt vmcnt(0)")
        SV = TA + 12
        for i in range(3): a(f"v_mov_b32 v{SV+i}, v{s_.Q1+i}")
        for j in range(4):
            a(f"v_mov_b32 v{s_.Q2+2*j}, 0"); a(f"v_mov_b32 v{s_.Q2+2*j+1}, 0")
        s_.load_q()
        a(f"s_mov_b32 s{s_.sKOFF}, s{s_.sKSAVE}")
        for j in range(4):
            a(f"v_mov_b32 v{M+j}, 0xff800000")
            for r in range(16): a(f"v_mov_b32 v{O[j]+r}, 0")
        a(f"s_mov_b32 s{sCNT}, 32")
        a.label(L('sloop'))
        s_.load_kv(0)
        a("s_waitcnt vmcnt(0)")
        for j in range(4):
            s_.qk1(SB[0], 0, j); s_.qk2(SB[0], 0, j)
            a("s_nop 15"); a("s_nop 7")
            vals = [SB[0] + i for i in range(16)]
            a(f"v_max3_f32 v{T0}, v{vals[0]}, v{vals[1]}, v{vals[2]}")
            k = 3
            while k < 16:
                b2 = vals[k + 1] if k + 1 < 16 else vals[k]
                a(f"v_max3_f32 v{T0}, v{T0}, v{vals[k]}, v{b2}")
                k += 2
            s_.crosshalf(T0, "v_max_f32")
            a(f"v_max_f32 v{T0}, v{T0}, v{M+j}")
            a(f"v_sub_f32 v{T1}, v{M+j}, v{T0}")
            a(f"v_exp_f32 v{T1}, v{T1}")
            a(f"v_mov_b32 v{M+j}, v{T0}")
            for r in range(16): a(f"v_sub_f32 v{SB[0]+r}, v{SB[0]+r}, v{T0}")
            for r in range(16): a(f"v_mul_f32 v{O[j]+r}, v{O[j]+r}, v{T1}")
            for r in range(16): e(0, r)
            a("s_nop 1")
            for i in range(8): c(0, i)
            a("s_nop 1")
            s_.pv(0, 0, j); s_.pv(1, 0, j)
            a("s_nop 15"); a("s_nop 7")
        a(f"s_sub_u32 s{sCNT}, s{sCNT}, 1")
        a(f"s_cmp_lg_u32 s{sCNT}, 0")
        a(f"s_cbranch_scc1 {L('sloop')}")
        for i in range(3): a(f"v_mov_b32 v{s_.Q1+i}, v{SV+i}")
        for j in range(4): get_l(j)
        a("s_nop 1")
        a.label(L('fin'))
        LL = TA + 4
        R4 = SB[1] + 12
        for j in range(4): a(f"v_rcp_f32 v{R4+j}, v{LREG+j}")
        for j in range(4): a(f"v_log_f32 v{LL+j}, v{LREG+j}")
        a("s_nop 0")
        for j in range(4): a(f"v_add_f32 v{LL+j}, v{LL+j}, v{M+j}")
        a(f"s_cmp_eq_u32 s{s_.sKH}, 0")
        a(f"s_cbranch_scc0 {L('kh1')}")
        def spin(addr_reg, target, tag, sleep):
            lab = a.newlabel(L(tag))
            a(f"s_mov_b32 s{sT1}, 0")
            a.label(lab)
            a(f"ds_read_b32 v{T1}, v{addr_reg}")
            a(f"s_add_u32 s{sT1}, s{sT1}, 1")
            a(f"s_cmp_ge_u32 s{sT1}, 0x100000")
            a(f"s_cbranch_scc1 {lab}_x")
            a("s_waitcnt lgkmcnt(0)")
            a(f"v_readfirstlane_b32 s{sT0}, v{T1}")
            a(f"s_cmp_eq_u32 s{sT0}, {target}")
            a(f"s_cbranch_scc1 {lab}_x")
            a(f"s_sleep {sleep}")
            a(f"s_branch {lab}")
            a.label(lab + "_x")
            a("s_waitcnt lgkmcnt(0)")
        def finish(keep, send):
            for j in send:
                for r in range(12): a(f"v_mul_f32 v{O[j]+r}, v{O[j]+r}, v{R4+j}")
            if s_.guard is not None:
                a(f"v_mov_b32 v{T0}, {s_.guard}")
                spin(T0, 4, 'gd', 8)
            for jj, j in enumerate(send):
                for q in range(3): a(f"ds_write_b128 v{VA}, {vr(O[j]+4*q,4)} offset:{jj*3328+q*1024}")
                a(f"ds_write_b32 v{VA4}, v{LL+j} offset:{jj*3328+3072}")
            for j in keep:
                for r in range(12): a(f"v_mul_f32 v{O[j]+r}, v{O[j]+r}, v{R4+j}")
            a("s_waitcnt lgkmcnt(0)")
            if s_.flagbase is None:
                a("s_barrier")
            else:
                a(f"s_lshl_b32 s{sT0}, s{s_.sW}, 2"); a(f"s_add_u32 s{sT0}, s{sT0}, {s_.flagbase}")
                a(f"v_mov_b32 v{T0}, s{sT0}"); a(f"v_mov_b32 v{T1}, 1")
                a(f"ds_write_b32 v{T0}, v{T1}")
                a(f"v_xor_b32 v{T0}, 8, v{T0}")
                spin(T0, 1, 'pf', 1)
            for jj, j in enumerate(keep):
                for q in range(3): a(f"ds_read_b128 {vr(SB[jj]+4*q,4)}, v{VB} offset:{jj*3328+q*1024}")
                a(f"ds_read_b32 v{P+6+jj}, v{VB4} offset:{jj*3328+3072}")
            a("s_waitcnt lgkmcnt(0)")
            W = TA + 16
            for jj, j in enumerate(keep):
                a(f"v_sub_f32 v{W+2*jj}, v{P+6+jj}, v{LL+j}"); a(f"v_sub_f32 v{W+2*jj+1}, v{LL+j}, v{P+6+jj}")
            for q in range(4): a(f"v_exp_f32 v{W+q}, v{W+q}")
            a("s_nop 0")
            for q in range(4): a(f"v_add_f32 v{W+q}, 1.0, v{W+q}")
            for q in range(4): a(f"v_rcp_f32 v{W+q}, v{W+q}")
            a("s_nop 0")
            for jj, j in enumerate(keep):
                R = SB[jj]
                for r in range(12): a(f"v_mul_f32 v{O[j]+r}, v{O[j]+r}, v{W+2*jj}")
                for r in range(12): a(f"v_fmac_f32 v{O[j]+r}, v{R+r}, v{W+2*jj+1}")
                for q in range(6): a(f"v_cvt_pk_bf16_f32 v{O[j]+q}, v{O[j]+2*q}, v{O[j]+2*q+1}")
                a(f"s_add_u32 s{sT0}, s{s_.sOB}, {j*NS_O*1024}")
                a(f"buffer_store_dwordx2 {vr(O[j],2)}, v{OF0}, {sr(s_.SRDO,4)}, s{sT0} offen")
                a(f"buffer_store_dwordx2 {vr(O[j]+2,2)}, v{OF1}, {sr(s_.SRDO,4)}, s{sT0} offen")
                a(f"s_mov_b64 exec, {sr(s_.sMLO,2)}")
                a(f"buffer_store_dwordx2 {vr(O[j]+4,2)}, v{OF2}, {sr(s_.SRDO,4)}, s{sT0} offen")
                a("s_mov_b64 exec, -1")
        finish([0, 1], [2, 3])
        a(f"s_branch {L('done')}")
        a.label(L('kh1'))
        finish([2, 3], [0, 1])
        a.label(L('done'))
```

```python
from gemm32 import *

def gen_k1(a: Asm, name="k1_kernel", nb=4, stamps=False):
    R = G32Regs
    T = R.T
    L = lambda x: f"{name}_{x}"
    SRDX, SRDW, SRDQ, SRDK, SRDXN = 8, 12, 16, 20, 24
    sW, sWM, sWN, sMB, sCB = 28, 29, 30, 31, 32
    sM0A, sM0B, sOffA, sOffB, sOnes, tA, tB, tC, sScale = 33, 34, 35, 36, 37, 38, 39, 40, 41
    sBLK, sHS, sWF = 46, 47, 48
    FR = R.FR
    SB = (7 % nb) * STAGE
    a.raw(kernel_header(name))
    a("s_cmp_ge_u32 s2, 256")
    a(f"s_cbranch_scc1 {L('end')}")
    a(f"s_and_b32 s{tA}, s2, 7"); a(f"s_lshr_b32 s{tB}, s2, 3")
    a(f"s_and_b32 s{sMB}, s{tA}, 3"); a(f"s_lshl_b32 s{sMB}, s{sMB}, 2")
    a(f"s_and_b32 s{tC}, s{tB}, 3"); a(f"s_add_u32 s{sMB}, s{sMB}, s{tC}")
    a(f"s_lshr_b32 s{sCB}, s{tA}, 2"); a(f"s_lshl_b32 s{sCB}, s{sCB}, 3")
    a(f"s_lshr_b32 s{tC}, s{tB}, 2"); a(f"s_add_u32 s{sCB}, s{sCB}, s{tC}")
    a(f"s_cmp_ge_u32 s{sCB}, 15")
    a(f"s_cbranch_scc1 {L('zero')}")
    def stamp(i):
        if stamps:
            a(f"s_memtime s[{60+4*i}:{61+4*i}]")
            a(f"s_memrealtime s[{62+4*i}:{63+4*i}]")
            a("s_waitcnt lgkmcnt(0)")
    stamp(0)
    a(f"s_load_dwordx4 s[4:7], s[0:1], {KA_X}")
    a(f"s_load_dwordx2 s[44:45], s[0:1], {KA_WS}")
    a(f"v_and_b32 v{R.VL}, 63, v0")
    a(f"v_lshrrev_b32 v{T[0]}, 6, v0")
    a("s_nop 0")
    a(f"v_readfirstlane_b32 s{sWF}, v{T[0]}")
    a(f"s_and_b32 s{sW}, s{sWF}, 3")
    a(f"s_lshr_b32 s{sWM}, s{sW}, 1"); a(f"s_and_b32 s{sWN}, s{sW}, 1")
    a(f"s_cmp_ge_u32 s{sWF}, 4")
    a(f"s_cbranch_scc1 {L('loader')}")

    a(f"s_mov_b32 s{sOnes}, 0x3f803f80")
    bq0 = emit_addr_setup(a, R, sW, sWM, sWN, 1280, 3840, True, True, False, tA, tB)
    a(f"s_lshl_b32 s{tA}, s{sWN}, 13"); a(f"s_add_u32 s{tA}, s{tA}, 16384")
    a(f"s_lshl_b32 s{tB}, s{sWM}, 6")
    a(f"v_xor_b32 v{R.BA}, s{tB}, v{bq0}")
    a(f"v_xor_b32 v{R.BA+1}, 64, v{R.BA}")
    a(f"v_add_u32 v{R.BA}, s{tA}, v{R.BA}")
    a(f"v_add_u32 v{R.BA+1}, s{tA}, v{R.BA+1}")
    for r in range(64): a(f"v_mov_b32 v{R.ACC+r}, 0")
    for r in (R.SX, R.SQ, R.CS, R.SX2, R.SQ2, R.CS2): a(f"v_mov_b32 v{r}, 0")
    a(f"s_cmp_ge_u32 s{sCB}, 10")
    a(f"s_cbranch_scc1 {L('vpath')}")

    def ct_s(dst, ni, tmp):
        a(f"s_xor_b32 s{dst}, s{sWM}, {ni}"); a(f"s_lshl_b32 s{tmp}, s{sWN}, 1"); a(f"s_add_u32 s{dst}, s{dst}, s{tmp}")
    def rt_s(dst, mi, tmp):
        a(f"s_xor_b32 s{dst}, s{sWN}, {mi}"); a(f"s_lshl_b32 s{tmp}, s{sWM}, 1"); a(f"s_add_u32 s{dst}, s{dst}, s{tmp}")

    def body(transposed):
        OFF = R.EOFF
        if transposed:
            a(f"s_mov_b32 s{sScale}, 1.0")
            a(f"s_mov_b32 s{sBLK}, {KVBLK}")
            a(f"s_cmp_lt_u32 s{sCB}, 5")
            a(f"s_cselect_b32 s{sScale}, {fhex(QSCALE)}, s{sScale}")
            a(f"s_cselect_b32 s{sBLK}, {QBLK}, s{sBLK}")
            a(f"s_cselect_b32 s{tC}, 0, 5")
            a(f"s_lshl_b32 s{sHS}, s{sBLK}, 6")
            a(f"s_sub_u32 s{tC}, s{sCB}, s{tC}")
            a(f"v_and_b32 v{T[3]}, 31, v{R.VL}")
            a(f"v_lshlrev_b32 v{FR+1}, 3, v{T[3]}")
            a(f"v_add_u32 v{FR+1}, 1024, v{FR+1}")
            a(f"v_lshlrev_b32 v{FR+2}, 4, v{T[3]}")
            a(f"v_lshrrev_b32 v{FR}, 5, v{R.VL}")
            for ni in range(2):
                ct_s(tA, ni, tB)
                a(f"s_lshl_b32 s{tA}, s{tA}, 3"); a(f"s_lshl_b32 s{tB}, s{tC}, 5"); a(f"s_add_u32 s{tA}, s{tA}, s{tB}")
                for j in range(4):
                    a(f"v_add_u32 v{T[0]}, s{tA}, v{FR}")
                    if j: a(f"v_add_u32 v{T[0]}, {2*j}, v{T[0]}")
                    a(f"v_mul_u32_u24 v{T[1]}, 205, v{T[0]}")
                    a(f"v_lshrrev_b32 v{T[1]}, 10, v{T[1]}")
                    a(f"v_mul_u32_u24 v{T[2]}, 5, v{T[1]}")
                    a(f"v_sub_u32 v{T[2]}, v{T[0]}, v{T[2]}")
                    a(f"v_mul_lo_u32 v{T[1]}, v{T[1]}, s{sHS}")
                    a(f"v_cmp_eq_u32 vcc, 4, v{T[2]}")
                    a(f"v_and_b32 v{T[4]}, 1, v{T[2]}")
                    a(f"v_lshl_add_u32 v{T[4]}, v{T[4]}, 9, v{FR+2}")
                    a(f"v_bfe_u32 v{T[5]}, v{T[2]}, 1, 1")
                    a(f"v_lshl_add_u32 v{T[4]}, v{T[5]}, 3, v{T[4]}")
                    a(f"v_cndmask_b32 v{T[4]}, v{T[4]}, v{FR+1}, vcc")
                    a(f"v_add_u32 v{OFF+4*ni+j}, v{T[4]}, v{T[1]}")
        else:
            for ni in range(2):
                ct_s(tA, ni, tB)
                a(f"v_and_b32 v{T[0]}, 31, v{R.VL}")
                a(f"s_sub_u32 s{tB}, s{sCB}, 10"); a(f"s_lshl_b32 s{tB}, s{tB}, 7"); a(f"s_lshl_b32 s{tA}, s{tA}, 5"); a(f"s_add_u32 s{tA}, s{tA}, s{tB}")
                a(f"v_add_u32 v{T[0]}, s{tA}, v{T[0]}")
                a(f"v_mul_u32_u24 v{T[1]}, 3277, v{T[0]}")
                a(f"v_lshrrev_b32 v{T[1]}, 16, v{T[1]}")
                a(f"v_mul_u32_u24 v{T[2]}, 20, v{T[1]}")
                a(f"v_sub_u32 v{T[2]}, v{T[0]}, v{T[2]}")
                a(f"v_mul_u32_u24 v{T[1]}, {64*KVBLK}, v{T[1]}")
                a(f"v_lshl_add_u32 v{T[1]}, v{T[2]}, 4, v{T[1]}")
                a(f"v_lshrrev_b32 v{T[2]}, 5, v{R.VL}")
                a(f"v_mul_u32_u24 v{T[2]}, 320, v{T[2]}")
                a(f"v_add_u32 v{OFF+ni}, v{T[1]}, v{T[2]}")
        a("s_waitcnt lgkmcnt(0)")
        a.srd(SRDQ, 44, NH * NT * QBLK, WS_Q); a.srd(SRDK, 44, NH * NT * KVBLK, WS_KV)
        if transposed:
            a(f"s_cmp_lt_u32 s{sCB}, 5")
            a(f"s_cbranch_scc1 {L('isq')}")
            for r in range(4): a(f"s_mov_b32 s{SRDQ+r}, s{SRDK+r}")
            a.label(L('isq'))
        stamp(1)
        emit_mainloop(a, R, 10, nb, SRDX, SRDW, sM0A, sM0B, sOffA, sOffB, 128, 64 * 3840, transposed,
                      True, False, False, sOnes, role='compute')
        stamp(2)
        a("s_nop 3")
        a(f"v_add_f32 v{R.CS}, v{R.CS}, v{R.CS2}")
        def halfsum(r):
            a(f"v_mov_b32 v{T[0]}, v{r}"); a(f"v_mov_b32 v{T[1]}, v{r}")
            a("s_nop 1")
            a(f"v_permlane32_swap_b32 v{T[0]}, v{T[1]}")
            a("s_nop 1")
            a(f"v_add_f32 v{r}, v{T[0]}, v{T[1]}")
        halfsum(R.CS)
        a(f"v_and_b32 v{T[0]}, 31, v{R.VL}")
        a(f"s_lshl_b32 s{tA}, s{sWN}, 1"); a(f"s_add_u32 s{tA}, s{tA}, s{sWM}"); a(f"s_lshl_b32 s{tA}, s{tA}, 7")
        a(f"s_add_u32 s{tA}, s{tA}, {SB}")
        a(f"v_lshl_add_u32 v{T[1]}, v{T[0]}, 2, s{tA}")
        a(f"ds_write_b32 v{T[1]}, v{R.CS} offset:1024")
        a("s_waitcnt lgkmcnt(0)")
        a("s_barrier")
        if transposed:
            for mi in range(2):
                rt_s(tA, mi, tB)
                a(f"s_lshl_b32 s{tA}, s{tA}, 7"); a(f"s_add_u32 s{tA}, s{tA}, {SB}")
                a(f"v_lshl_add_u32 v{T[1]}, v{T[0]}, 2, s{tA}")
                a(f"ds_read_b32 v{FR+2*mi}, v{T[1]}")
                a(f"ds_read_b32 v{FR+2*mi+1}, v{T[1]} offset:512")
            a(f"v_lshrrev_b32 v{T[2]}, 5, v{R.VL}")
            for ni in range(2):
                ct_s(tA, ni, tB)
                a(f"s_lshl_b32 s{tA}, s{tA}, 7"); a(f"s_add_u32 s{tA}, s{tA}, {SB}")
                a(f"v_lshl_add_u32 v{T[1]}, v{T[2]}, 4, s{tA}")
                for j in range(4):
                    a(f"ds_read_b128 {vr(FR+4+16*ni+4*j,4)}, v{T[1]} offset:{1024+32*j}")
            a("s_waitcnt lgkmcnt(0)")
            for mi in range(2):
                a(f"v_mul_f32 v{FR+2*mi}, s{sScale}, v{FR+2*mi}")
                a(f"v_mul_f32 v{FR+2*mi+1}, s{sScale}, v{FR+2*mi+1}")
            for mi in range(2):
                rt_s(tA, mi, tB)
                a(f"s_lshl_b32 s{tB}, s{sMB}, 2"); a(f"s_add_u32 s{tA}, s{tA}, s{tB}")
                a(f"s_mul_i32 s{tA}, s{tA}, s{sBLK}")
                for ni in range(2):
                    acc = R.ACC + 32 * mi + 16 * ni
                    for j in range(4):
                        for i in range(4):
                            r = acc + 4 * j + i
                            a(f"v_mul_f32 v{r}, v{r}, v{FR+2*mi}")
                        for i in range(4):
                            r = acc + 4 * j + i
                            a(f"v_fmac_f32 v{r}, v{FR+2*mi+1}, v{FR+4+16*ni+4*j+i}")
                        a(f"v_cvt_pk_bf16_f32 v{acc+4*j}, v{acc+4*j}, v{acc+4*j+1}")
                        a(f"v_cvt_pk_bf16_f32 v{acc+4*j+1}, v{acc+4*j+2}, v{acc+4*j+3}")
                        a(f"buffer_store_dwordx2 {vr(acc+4*j,2)}, v{OFF+4*ni+j}, {sr(SRDQ,4)}, s{tA} offen")
        else:
            for ni in range(2):
                ct_s(tA, ni, tB)
                a(f"s_lshl_b32 s{tB}, s{tA}, 7"); a(f"s_add_u32 s{tB}, s{tB}, {SB}")
                a(f"v_lshl_add_u32 v{T[1]}, v{T[0]}, 2, s{tB}")
                a(f"ds_read_b32 v{OFF+2+ni}, v{T[1]} offset:1024")
            for mi in range(2):
                rt_s(tA, mi, tB)
                a(f"s_lshl_b32 s{tB}, s{tA}, 7"); a(f"s_add_u32 s{tB}, s{tB}, {SB}")
                a(f"v_lshrrev_b32 v{T[2]}, 5, v{R.VL}")
                a(f"v_lshl_add_u32 v{T[1]}, v{T[2]}, 4, s{tB}")
                for j in range(4):
                    a(f"ds_read_b128 {vr(FR+4*j,4)}, v{T[1]} offset:{32*j}")
                    a(f"ds_read_b128 {vr(FR+16+4*j,4)}, v{T[1]} offset:{512+32*j}")
                a(f"s_lshl_b32 s{tB}, s{sMB}, 2"); a(f"s_add_u32 s{tA}, s{tA}, s{tB}")
                a(f"s_mul_i32 s{tA}, s{tA}, {KVBLK}")
                a("s_waitcnt lgkmcnt(0)")
                for ni in range(2):
                    acc = R.ACC + 32 * mi + 16 * ni
                    for r in range(16):
                        a(f"v_mul_f32 v{acc+r}, v{acc+r}, v{FR+r}")
                    for r in range(16):
                        a(f"v_fmac_f32 v{acc+r}, v{FR+16+r}, v{OFF+2+ni}")
                    for q in range(8):
                        a(f"v_cvt_pk_bf16_f32 v{acc+q}, v{acc+2*q}, v{acc+2*q+1}")
                    for u in range(2):
                        a(f"buffer_store_dwordx4 {vr(acc+4*u,4)}, v{OFF+ni}, {sr(SRDK,4)}, s{tA} offen offset:{1280+640*u}")
    body(True)
    a(f"s_branch {L('fini')}")
    a.label(L('vpath'))
    body(False)
    a(f"s_branch {L('fini')}")

    a.label(L('loader'))
    emit_dma_setup(a, R, 1280, 3840)
    a(f"v_and_b32 v{T[0]}, 31, v{R.VL}"); a(f"v_lshrrev_b32 v{T[1]}, 5, v{R.VL}")
    a(f"v_bfe_u32 v{T[2]}, v{T[0]}, 1, 3")
    a(f"s_lshl_b32 s{tA}, s{sW}, 12")
    for s_ in range(4):
        a(f"v_add_u32 v{T[3]}, {2*s_}, v{T[1]}")
        a(f"v_xor_b32 v{T[3]}, v{T[3]}, v{T[2]}")
        a(f"v_lshlrev_b32 v{T[3]}, 4, v{T[3]}")
        a(f"v_lshl_add_u32 v{R.AA+s_}, v{T[0]}, 7, v{T[3]}")
        a(f"v_add_u32 v{R.AA+s_}, s{tA}, v{R.AA+s_}")
    for r in (R.SX, R.SQ, R.SX2, R.SQ2): a(f"v_mov_b32 v{r}, 0")
    a(f"s_lshl_b32 s{sM0A}, s{sW}, 12")
    a(f"s_add_u32 s{sM0B}, s{sM0A}, 16384")
    a(f"s_lshl_b32 s{tA}, s{sMB}, 7"); a(f"s_lshl_b32 s{tB}, s{sW}, 5"); a(f"s_add_u32 s{tA}, s{tA}, s{tB}")
    a(f"s_mul_i32 s{sOffA}, s{tA}, 1280")
    a(f"s_mul_i32 s{sOffB}, s{sWN}, {32*3840}")
    a(f"s_lshl_b32 s{tA}, s{sCB}, 8"); a(f"s_add_u32 s{sOffB}, s{sOffB}, s{tA}")
    a(f"s_lshl_b32 s{tA}, s{sWM}, 7"); a(f"s_add_u32 s{sOffB}, s{sOffB}, s{tA}")
    a(f"v_and_b32 v{T[0]}, 31, v{R.VL}"); a(f"v_lshrrev_b32 v{T[1]}, 5, v{R.VL}")
    a(f"v_mul_u32_u24 v{T[0]}, 1280, v{T[0]}")
    a(f"v_lshl_add_u32 v{T[5]}, v{T[1]}, 4, v{T[0]}")
    a(f"s_lshl_b32 s{tC}, s{sCB}, 5"); a(f"s_add_u32 s{tC}, s{sOffA}, s{tC}")
    a("s_waitcnt lgkmcnt(0)")
    a.srd(SRDX, 4, S * D * 2); a.srd(SRDW, 6, D * 3840)
    a.srd(SRDXN, 44, NT * NS_O * 1024, WS_XN)
    stamp(1)
    emit_mainloop(a, R, 10, nb, SRDX, SRDW, sM0A, sM0B, sOffA, sOffB, 128, 64 * 3840, True,
                  False, False, False, None, role='loader', rowstats=True)
    for q in range(3):
        a(f"buffer_load_dwordx4 {vr(R.XP+4*q,4)}, v{T[5]}, {sr(SRDX,4)}, s{tC} offen offset:{q*480}")
    stamp(2)
    a(f"v_add_f32 v{R.SX}, v{R.SX}, v{R.SX2}"); a(f"v_add_f32 v{R.SQ}, v{R.SQ}, v{R.SQ2}")
    for r in (R.SX, R.SQ):
        a(f"v_mov_b32 v{T[0]}, v{r}"); a(f"v_mov_b32 v{T[1]}, v{r}")
        a("s_nop 1")
        a(f"v_permlane32_swap_b32 v{T[0]}, v{T[1]}")
        a("s_nop 1")
        a(f"v_add_f32 v{r}, v{T[0]}, v{T[1]}")
    a(f"v_mul_f32 v{R.SX}, {fhex(1.0/640)}, v{R.SX}")
    a(f"v_mul_f32 v{R.SQ}, {fhex(1.0/640)}, v{R.SQ}")
    a(f"v_fma_f32 v{R.SQ}, -v{R.SX}, v{R.SX}, v{R.SQ}")
    a(f"v_max_f32 v{R.SQ}, 0, v{R.SQ}")
    a(f"v_add_f32 v{R.SQ}, {fhex(1e-5)}, v{R.SQ}")
    a(f"v_rsq_f32 v{T[2]}, v{R.SQ}")
    a(f"v_and_b32 v{T[0]}, 31, v{R.VL}")
    a(f"v_mul_f32 v{T[3]}, v{R.SX}, v{T[2]}")
    a(f"v_sub_f32 v{T[3]}, 0, v{T[3]}")
    a(f"s_lshl_b32 s{tA}, s{sW}, 7"); a(f"s_add_u32 s{tA}, s{tA}, {SB}")
    a(f"v_lshl_add_u32 v{T[1]}, v{T[0]}, 2, s{tA}")
    a(f"ds_write_b32 v{T[1]}, v{T[2]}")
    a(f"ds_write_b32 v{T[1]}, v{T[3]} offset:512")
    a("s_waitcnt lgkmcnt(0)")
    a("s_barrier")
    a(f"s_lshl_b32 s{tA}, s{sMB}, 2"); a(f"s_add_u32 s{tA}, s{tA}, s{sW}")
    a(f"s_mul_i32 s{tA}, s{tA}, 40"); a(f"s_add_u32 s{tA}, s{tA}, s{sCB}"); a(f"s_lshl_b32 s{tA}, s{tA}, 10")
    a(f"v_lshlrev_b32 v{T[4]}, 4, v{R.VL}")
    a("s_waitcnt vmcnt(0) lgkmcnt(0)")
    for q in range(3):
        if q == 2:
            a(f"s_cmp_ge_u32 s{sCB}, 10")
            a(f"s_cbranch_scc1 {L('fini')}")
        for r in range(4):
            src = R.XP + 4 * q + r
            a(f"v_lshlrev_b32 v{T[0]}, 16, v{src}")
            a(f"v_and_b32 v{T[1]}, 0xffff0000, v{src}")
            a(f"v_fma_f32 v{T[0]}, v{T[0]}, v{T[2]}, v{T[3]}")
            a(f"v_fma_f32 v{T[1]}, v{T[1]}, v{T[2]}, v{T[3]}")
            a(f"v_cvt_pk_bf16_f32 v{src}, v{T[0]}, v{T[1]}")
        a(f"s_add_u32 s{tB}, s{tA}, {q*15*1024}")
        a(f"buffer_store_dwordx4 {vr(R.XP+4*q,4)}, v{T[4]}, {sr(SRDXN,4)}, s{tB} offen")
    a.label(L('fini'))
    if stamps:
        a("s_waitcnt vmcnt(0)")
        stamp(3)
        a(f"s_cmp_ge_u32 s{sWF}, 4")
        a(f"s_cbranch_scc1 {L('end')}")
        emit_stamp_store(a, 44, sW, tA, T[0], R.FR)
    a(f"s_branch {L('end')}")
    a.label(L('zero'))
    a(f"s_load_dwordx2 s[44:45], s[0:1], {KA_WS}")
    a("v_lshlrev_b32 v1, 3, v0")
    a("v_mov_b32 v2, 0"); a("v_mov_b32 v3, 0")
    a("s_waitcnt lgkmcnt(0)")
    a.srd(8, 44, 4096, WS_FLAG)
    a("buffer_store_dwordx2 v[2:3], v1, s[8:11], 0 offen")
    a.label(L('end'))
    a("s_endpgm")
    return R.NV
```

```python
from asmlib import *
from layout import *
from attn2 import Attn
import math
C1 = -2.0 * math.sqrt(2.0 / math.pi) * LOG2E
C2 = C1 * 0.044715
GSTAGE = 49152
LDS_SYNC = 3 * GSTAGE
LDS_TOTAL = LDS_SYNC + 256
XBASE = 120832
WS_GT = WS_G
DSTAGE = 9216
SC1 = True
DBG2 = set()

def sw_barrier(a, sTgt, vt0, vt1, st, tag):
    lab = a.newlabel(tag)
    a(f"s_add_u32 s{sTgt}, s{sTgt}, 4")
    a("s_mov_b64 exec, 1")
    a(f"ds_add_u32 v{vt0}, v{vt1}")
    a("s_mov_b64 exec, -1")
    a("s_mov_b32 s57, 0")
    a.label(lab)
    a(f"ds_read_b32 v{vt1+1}, v{vt0}")
    a("s_add_u32 s57, s57, 1")
    a("s_cmp_ge_u32 s57, 0x100000")
    a(f"s_cbranch_scc1 {lab}_x")
    a("s_waitcnt lgkmcnt(0)")
    a(f"v_readfirstlane_b32 s{st}, v{vt1+1}")
    a(f"s_cmp_ge_u32 s{st}, s{sTgt}")
    a(f"s_cbranch_scc1 {lab}_x")
    a("s_sleep 2")
    a(f"s_branch {lab}")
    a.label(lab + "_x")
    a("s_waitcnt lgkmcnt(0)")

def gen_k2(a: Asm, name="k2_kernel", stamps=False, do_down=True, prio_attn=0, prio_gemm=0, serial=False, cluster=False):
    L = lambda x: f"{name}_{x}"
    a.raw(kernel_header(name))
    a("s_cmp_ge_u32 s2, 256")
    a(f"s_cbranch_scc1 {L('end')}")
    a("v_lshrrev_b32 v2, 6, v0")
    a("s_nop 0")
    a("v_readfirstlane_b32 s20, v2")
    a(f"s_load_dwordx4 s[4:7], s[0:1], {KA_WG}")
    a(f"s_load_dwordx2 s[44:45], s[0:1], {KA_WS}")
    a(f"s_load_dwordx2 s[46:47], s[0:1], {KA_WD}")
    a(f"s_load_dwordx2 s[48:49], s[0:1], {KA_DBG}")
    a(f"v_and_b32 v1, 63, v0")
    VL = 1; T = [2, 3, 4, 5, 6, 7]
    VA0, VB0, VA, VB = 8, 9, 10, 11
    DB = 12
    VSY, VONE = 208, 209
    ACC = 16
    FR = 144
    NV = 212
    SRDA, SRDB, SRDH = 8, 12, 16
    sW, sWM, sWN, sMB, sHB = 28, 29, 30, 31, 32
    sOffA, sOffB, sStage, sDma, sIt, sTgt, tA, tB, tC, sOffA2 = 33, 34, 35, 36, 37, 38, 39, 40, 41, 42
    def stamp(i):
        if stamps:
            a(f"s_memtime s[{60+4*i}:{61+4*i}]")
            a(f"s_memrealtime s[{62+4*i}:{63+4*i}]")
            a("s_waitcnt lgkmcnt(0)")
    a(f"s_and_b32 s{sW}, s20, 3")
    a(f"s_lshr_b32 s{sWM}, s{sW}, 1"); a(f"s_and_b32 s{sWN}, s{sW}, 1")
    a(f"s_and_b32 s{tA}, s2, 7"); a(f"s_lshr_b32 s{tB}, s2, 3")
    a(f"s_and_b32 s{sMB}, s{tA}, 1"); a(f"s_lshl_b32 s{sMB}, s{sMB}, 2"); a(f"s_and_b32 s{tC}, s{tB}, 3"); a(f"s_add_u32 s{sMB}, s{sMB}, s{tC}")
    a(f"s_lshr_b32 s{sHB}, s{tA}, 1"); a(f"s_mul_i32 s{sHB}, s{sHB}, 7"); a(f"s_lshr_b32 s{tC}, s{tB}, 2"); a(f"s_add_u32 s{sHB}, s{sHB}, s{tC}")
    a(f"s_cmp_ge_u32 s{tC}, 7"); a(f"s_cselect_b32 s{sHB}, 27, s{sHB}")
    a("s_cmp_ge_u32 s20, 4")
    a(f"s_cbranch_scc1 {L('gemm')}")
    def astamp(i):
        if stamps:
            a(f"s_memtime s[{60+4*i}:{61+4*i}]")
            a(f"s_memrealtime s[{62+4*i}:{63+4*i}]")
            a("s_waitcnt lgkmcnt(0)")
    at = Attn(a, name + "_at", sW, XBASE, LDS_SYNC + 16, LDS_SYNC + 32, stamps=astamp, force_slow=("slow" in DBG2))
    astamp(0)
    a(f"v_lshlrev_b32 v3, 2, v1"); a(f"v_add_u32 v3, {LDS_SYNC}, v3"); a("v_mov_b32 v4, 0")
    a("s_cmp_eq_u32 s20, 0")
    a(f"s_cbranch_scc0 {L('noinit')}")
    a("ds_write_b32 v3, v4")
    a.label(L('noinit'))
    a(f"s_cmp_ge_u32 s{sHB}, 27")
    a(f"s_cbranch_scc1 {L('ld_skip')}")
    a(f"v_lshrrev_b32 v{T[0]}, 3, v{VL}"); a(f"v_and_b32 v{T[1]}, 7, v{VL}"); a(f"v_bfe_u32 v{T[3]}, v{VL}, 4, 1")
    a(f"v_lshlrev_b32 v{T[3]}, 2, v{T[3]}"); a(f"v_xor_b32 v{T[3]}, v{T[3]}, v{T[1]}"); a(f"v_lshlrev_b32 v{T[3]}, 4, v{T[3]}")
    a(f"v_mul_u32_u24 v{T[4]}, 3456, v{T[0]}"); a(f"v_add_u32 v{T[3]}, v{T[3]}, v{T[4]}")
    for i in range(4): a(f"v_add_u32 v{DB+i}, {8*i*3456 - 1024*i}, v{T[3]}")
    a(f"v_lshlrev_b32 v{T[5]}, 4, v{VL}")
    a(f"s_lshl_b32 s{tA}, s{sMB}, 3"); a(f"s_lshl_b32 s{tB}, s{sW}, 1"); a(f"s_add_u32 s{tA}, s{tA}, s{tB}")
    a(f"s_mul_i32 s{sOffA}, s{tA}, {40*1024}")
    a(f"s_mul_i32 s{sOffB}, s{sWN}, {32*3456}")
    a(f"s_lshl_b32 s{tA}, s{sHB}, 7"); a(f"s_add_u32 s{sOffB}, s{sOffB}, s{tA}")
    a("s_waitcnt lgkmcnt(0)")
    a(f"s_cmp_ge_u32 s{sW}, 2")
    a("s_cselect_b32 s4, s6, s4"); a("s_cselect_b32 s5, s7, s5")
    a.srd(SRDB, 4, D * 3456); a.srd(SRDA, 44, NT * NS_O * 1024, WS_XN)
    def dma():
        a(f"s_lshl_b32 s{tA}, s{sW}, 13"); a(f"s_add_u32 s{tA}, s{tA}, s{sDma}")
        a(f"s_mov_b32 m0, s{tA}")
        a(f"s_add_u32 s{sOffA2}, s{sOffA}, {40*1024}")
        for i in range(4): a(f"buffer_load_dwordx4 v{T[5]}, {sr(SRDA,4)}, s{sOffA} offen offset:{1024*i} lds")
        a(f"s_add_u32 m0, s{tA}, 4096")
        a(f"s_add_u32 s{sOffA}, s{sOffA}, 4096")
        for i in range(4): a(f"buffer_load_dwordx4 v{T[5]}, {sr(SRDA,4)}, s{sOffA2} offen offset:{1024*i} lds")
        a(f"s_lshl_b32 s{tA}, s{sW}, 12"); a(f"s_add_u32 s{tA}, s{tA}, s{sDma}"); a(f"s_add_u32 m0, s{tA}, 32768")
        for i in range(4): a(f"buffer_load_dwordx4 v{DB+i}, {sr(SRDB,4)}, s{sOffB} offen offset:{1024*i} lds")
        a(f"s_add_u32 s{sOffB}, s{sOffB}, {64*3456}")
        a(f"s_add_u32 s{sDma}, s{sDma}, {GSTAGE}")
        a(f"s_cmp_eq_u32 s{sDma}, {3*GSTAGE}")
        a(f"s_cselect_b32 s{sDma}, 0, s{sDma}")
    a(f"s_mov_b32 s{sDma}, 0")
    dma(); dma()
    at.setup(44)
    at.first_loads()
    dma()
    a("s_waitcnt vmcnt(44) lgkmcnt(0)")
    a("s_barrier")
    a("s_waitcnt vmcnt(32)")
    a("s_barrier")
    dma()
    a(f"s_mov_b32 s{sIt}, 1")
    a.label(L('ld_loop'))
    a("s_waitcnt vmcnt(12)")
    a("s_barrier")
    dma()
    a(f"s_add_u32 s{sIt}, s{sIt}, 1")
    a(f"s_cmp_lt_u32 s{sIt}, 7")
    a(f"s_cbranch_scc1 {L('ld_loop')}")
    at.maxphase(0)
    a("s_waitcnt vmcnt(12)")
    a("s_barrier")
    at.maxphase(1)
    a("s_waitcnt vmcnt(0)")
    a("s_barrier")
    a(f"s_branch {L('attn')}")
    a.label(L('ld_skip'))
    a("s_waitcnt lgkmcnt(0)")
    at.setup(44)
    at.first_loads()
    a("s_barrier")
    a("s_waitcnt vmcnt(4)")
    at.maxphase()
    a.label(L('attn'))
    if prio_attn: a(f"s_setprio {prio_attn}")
    at.main()
    if stamps:
        a("s_waitcnt vmcnt(0)")
        astamp(3)
        a.srd(52, 44, 1 << 20, WS_END)
        a(f"s_lshl_b32 s{tA}, s2, 2"); a(f"s_add_u32 s{tA}, s{tA}, s{sW}"); a(f"s_lshl_b32 s{tA}, s{tA}, 6")
        a(f"v_mov_b32 v{T[0]}, s{tA}")
        for i in range(4):
            for q in range(4): a(f"v_mov_b32 v{8+q}, s{60+4*i+q}")
            a("s_mov_b64 exec, 1")
            a(f"buffer_store_dwordx4 v[8:11], v{T[0]}, s[52:55], 0 offen offset:{16*i}")
            a("s_mov_b64 exec, -1")
            a("s_nop 1")
    a("s_endpgm")
    nva = at.NV
    a.label(L('gemm'))
    if prio_gemm: a(f"s_setprio {prio_gemm}")
    a(f"v_mov_b32 v{VSY}, {LDS_SYNC}"); a(f"v_mov_b32 v{VONE}, 1")
    a(f"s_mov_b32 s{sTgt}, 0")
    stamp(0)
    a(f"s_cmp_ge_u32 s{sHB}, 27")
    a(f"s_cbranch_scc1 {L('gu_none')}")
    a(f"v_lshlrev_b32 v{VA0}, 4, v{VL}")
    a(f"s_lshl_b32 s{tA}, s{sWM}, 14"); a(f"v_add_u32 v{VA0}, s{tA}, v{VA0}")
    a(f"v_and_b32 v{T[2]}, 15, v{VL}"); a(f"v_lshrrev_b32 v{T[1]}, 5, v{VL}")
    a(f"v_lshrrev_b32 v{T[3]}, 2, v{T[2]}")
    a(f"v_lshl_add_u32 v{T[3]}, v{T[1]}, 3, v{T[3]}")
    a(f"v_lshlrev_b32 v{T[3]}, 7, v{T[3]}")
    a(f"v_and_b32 v{T[4]}, 3, v{T[2]}"); a(f"v_lshl_add_u32 v{T[3]}, v{T[4]}, 3, v{T[3]}")
    a(f"v_bfe_u32 v{T[4]}, v{VL}, 4, 1"); a(f"v_lshl_add_u32 v{T[3]}, v{T[4]}, 5, v{T[3]}")
    a(f"v_bfe_u32 v{T[4]}, v{T[2]}, 3, 1"); a(f"v_lshl_add_u32 v{T[3]}, v{T[4]}, 6, v{T[3]}")
    a(f"s_lshl_b32 s{tB}, s{sWN}, 6"); a(f"v_xor_b32 v{VB0}, s{tB}, v{T[3]}")
    a(f"v_add_u32 v{VB0}, 32768, v{VB0}")
    a(f"v_lshlrev_b32 v{T[5]}, 4, v{VL}")
    for r in range(128): a(f"v_mov_b32 v{ACC+r}, 0")
    a("s_waitcnt lgkmcnt(0)")
    a.srd(SRDH, 44, NT * NS_H * 1024, WS_H)
    def X(p, mi): return FR + 24 * p + 4 * mi
    def W(p, ni): return FR + 24 * p + 16 + 4 * ni
    def reads(ks):
        p = ks & 1
        out = []
        for mi in range(4): out.append(f"ds_read_b128 {vr(X(p,mi),4)}, v{VA} offset:{mi*4096 + ks*1024}")
        for ni in range(2):
            for r in range(2): out.append(f"ds_read_b64_tr_b16 {vr(W(p,ni)+2*r,2)}, v{VB} offset:{ni*8192 + ks*2048 + r*512}")
        return out
    def mfmas(ks, rd):
        p = ks & 1
        k = 0
        for mi in range(4):
            for ni in range(2):
                acc = ACC + 32 * mi + 16 * ni
                a(f"v_mfma_f32_32x32x16_bf16 {vr(acc,16)}, {vr(W(p,ni),4)}, {vr(X(p,mi),4)}, {vr(acc,16)}")
                if k < len(rd): a(rd[k])
                k += 1
    a(f"s_mov_b32 s{sStage}, 0"); a(f"s_mov_b32 s{sIt}, 0")
    a("s_barrier")
    a(f"v_mov_b32 v{VA}, v{VA0}"); a(f"v_mov_b32 v{VB}, v{VB0}")
    for ins in reads(0): a(ins)
    a.label(L('gu_loop'))
    for ks in range(3):
        a("s_waitcnt lgkmcnt(0)")
        mfmas(ks, reads(ks + 1))
    a("s_waitcnt lgkmcnt(0)")
    a(f"s_cmp_eq_u32 s{sIt}, 9")
    a(f"s_cbranch_scc1 {L('gu_last')}")
    a("s_barrier")
    a(f"s_add_u32 s{sStage}, s{sStage}, {GSTAGE}")
    a(f"s_cmp_eq_u32 s{sStage}, {3*GSTAGE}")
    a(f"s_cselect_b32 s{sStage}, 0, s{sStage}")
    a(f"v_add_u32 v{VA}, s{sStage}, v{VA0}"); a(f"v_add_u32 v{VB}, s{sStage}, v{VB0}")
    mfmas(3, reads(0))
    a(f"s_add_u32 s{sIt}, s{sIt}, 1")
    a(f"s_branch {L('gu_loop')}")
    a.label(L('gu_last'))
    mfmas(3, [])
    stamp(1)
    if "stop_gu_x" in DBG2:
        a(f"v_mov_b32 v{T[0]}, {LDS_SYNC + 32}"); a("s_mov_b64 exec, 1"); a(f"ds_add_u32 v{T[0]}, v{VONE}"); a("s_mov_b64 exec, -1")
        stamp(2)
        a(f"s_branch {L('gend')}")
    a("s_nop 15")
    a(f"s_mov_b32 s{tC}, {fhex(C2)}")
    a(f"v_mov_b32 v{T[1]}, {fhex(C1)}")
    for mi in range(4):
        g0, u0 = ACC + 32 * mi, ACC + 32 * mi + 16
        tmp = FR
        for half in range(2):
            rs = range(8 * half, 8 * half + 8)
            for r in rs: a(f"v_mul_f32 v{tmp+r%8}, v{g0+r}, v{g0+r}")
            for r in rs: a(f"v_fma_f32 v{tmp+r%8}, v{tmp+r%8}, s{tC}, v{T[1]}")
            for r in rs: a(f"v_mul_f32 v{tmp+r%8}, v{tmp+r%8}, v{g0+r}")
            for r in rs: a(f"v_exp_f32 v{tmp+r%8}, v{tmp+r%8}")
            for r in rs: a(f"v_mul_f32 v{u0+r}, v{u0+r}, v{g0+r}")
            for r in rs: a(f"v_add_f32 v{tmp+r%8}, 1.0, v{tmp+r%8}")
            for r in rs: a(f"v_rcp_f32 v{tmp+r%8}, v{tmp+r%8}")
            a("s_nop 0")
            for r in rs: a(f"v_mul_f32 v{u0+r}, v{u0+r}, v{tmp+r%8}")
            for q in range(4): a(f"v_cvt_pk_bf16_f32 v{g0+8*half+q}, v{u0+8*half+2*q}, v{u0+8*half+2*q+1}")
            a(f"s_lshl_b32 s{tA}, s{sMB}, 3"); a(f"s_lshl_b32 s{tB}, s{sWM}, 2"); a(f"s_add_u32 s{tA}, s{tA}, s{tB}")
            a(f"s_add_u32 s{tA}, s{tA}, {mi}"); a(f"s_mul_i32 s{tA}, s{tA}, {NS_H}")
            a(f"s_lshl_b32 s{tB}, s{sHB}, 2"); a(f"s_add_u32 s{tA}, s{tA}, s{tB}")
            a(f"s_lshl_b32 s{tB}, s{sWN}, 1"); a(f"s_add_u32 s{tA}, s{tA}, s{tB}"); a(f"s_add_u32 s{tA}, s{tA}, {half}")
            a(f"s_lshl_b32 s{tA}, s{tA}, 10")
            a(f"buffer_store_dwordx4 {vr(g0+8*half,4)}, v{T[5]}, {sr(SRDH,4)}, s{tA} offen sc0 sc1")
    a("s_waitcnt vmcnt(0)")
    sw_barrier(a, sTgt, VSY, VONE, tA, L('sb'))
    a(f"s_cmp_eq_u32 s{sW}, 0")
    a(f"s_cbranch_scc0 {L('gu_skip')}")
    a.srd(52, 44, 4096, WS_FLAG)
    a(f"s_lshl_b32 s{tA}, s{sMB}, 5"); a(f"s_add_u32 s{tA}, s{tA}, s{sHB}"); a(f"s_lshl_b32 s{tA}, s{tA}, 2")
    a(f"v_mov_b32 v{T[0]}, s{tA}"); a(f"v_mov_b32 v{T[1]}, 1")
    a("s_mov_b64 exec, 1")
    a(f"buffer_store_dword v{T[1]}, v{T[0]}, s[52:55], 0 offen sc0 sc1")
    a("s_mov_b64 exec, -1")
    a(f"s_branch {L('gu_skip')}")
    a.label(L('gu_none'))
    a("s_waitcnt lgkmcnt(0)")
    a("s_barrier")
    a.label(L('gu_skip'))
    a("s_waitcnt lgkmcnt(0)")
    a(f"v_mov_b32 v{T[0]}, {LDS_SYNC + 32}")
    a("s_mov_b64 exec, 1")
    a(f"ds_add_u32 v{T[0]}, v{VONE}")
    a("s_mov_b64 exec, -1")
    if "stop_pub" in DBG2:
        stamp(2)
        a(f"s_branch {L('gend')}")
    gen_down(a, name, L, stamp, locals())
    a.label(L('gend'))
    if stamps:
        a("s_waitcnt vmcnt(0)")
        stamp(3)
        a.srd(52, 44, 1 << 20, WS_END + 65536)
        a(f"s_lshl_b32 s{tA}, s2, 2"); a(f"s_add_u32 s{tA}, s{tA}, s{sW}"); a(f"s_lshl_b32 s{tA}, s{tA}, 6")
        a(f"v_mov_b32 v{T[0]}, s{tA}")
        for i in range(4):
            for q in range(4): a(f"v_mov_b32 v{FR+q}, s{60+4*i+q}")
            a("s_mov_b64 exec, 1")
            a(f"buffer_store_dwordx4 {vr(FR,4)}, v{T[0]}, s[52:55], 0 offen offset:{16*i}")
            a("s_mov_b64 exec, -1")
            a("s_nop 1")
    a.label(L('end'))
    a("s_endpgm")
    return max(nva, NV)

def gen_down(a, name, L, stamp, env):
    T = env['T']; VL = env['VL']; VSY = env['VSY']; VONE = env['VONE']
    sW = env['sW']; sTgt = env['sTgt']; tA, tB, tC = env['tA'], env['tB'], env['tC']
    SRDA, SRDB, SRDG = 8, 12, 16
    sRB, sCBk, sOffA, sOffB, sN, sIt, sBufD, sBufR, sOffA2, sBase = 50, 51, 33, 34, 35, 37, 36, 42, 43, 56
    VAs, VB, VR, VRA = 8, 9, 14, 15
    ACC = 16
    AF = 96
    WF = 112
    a(f"s_and_b32 s{tA}, s2, 7"); a(f"s_lshr_b32 s{tB}, s2, 3")
    a(f"s_lshr_b32 s{sRB}, s{tA}, 1"); a(f"s_lshl_b32 s{sRB}, s{sRB}, 3"); a(f"s_and_b32 s{tC}, s{tB}, 7"); a(f"s_add_u32 s{sRB}, s{sRB}, s{tC}")
    a(f"s_and_b32 s{sCBk}, s{tA}, 1"); a(f"s_lshl_b32 s{sCBk}, s{sCBk}, 2"); a(f"s_lshr_b32 s{tC}, s{tB}, 3"); a(f"s_add_u32 s{sCBk}, s{sCBk}, s{tC}")
    a(f"v_and_b32 v{T[0]}, 15, v{VL}"); a(f"v_lshrrev_b32 v{T[1]}, 4, v{VL}")
    a(f"v_lshlrev_b32 v{VAs}, 4, v{T[0]}")
    a(f"v_lshl_add_u32 v{VAs}, v{T[1]}, 9, v{VAs}")
    for i in range(5):
        a(f"v_add_u32 v{T[2]}, {64*i}, v{VL}")
        a(f"v_mul_u32_u24 v{T[3]}, 6554, v{T[2]}")
        a(f"v_lshrrev_b32 v{T[3]}, 16, v{T[3]}")
        a(f"v_mul_u32_u24 v{T[4]}, 10, v{T[3]}")
        a(f"v_sub_u32 v{T[4]}, v{T[2]}, v{T[4]}")
        a(f"v_mul_u32_u24 v{T[3]}, 1280, v{T[3]}")
        a(f"v_lshl_add_u32 v{T[3]}, v{T[4]}, 4, v{T[3]}")
        a(f"v_subrev_u32 v{VB+i}, {1024*(i%4)}, v{T[3]}")
        a(f"v_add_u32 v{VB+i}, 4096, v{VB+i}")
    a(f"v_lshrrev_b32 v{T[2]}, 1, v{T[1]}"); a(f"v_lshlrev_b32 v{T[2]}, 4, v{T[2]}")
    a(f"v_and_b32 v{T[3]}, 1, v{T[1]}"); a(f"v_lshl_add_u32 v{T[2]}, v{T[3]}, 2, v{T[2]}")
    a(f"v_lshrrev_b32 v{T[3]}, 2, v{T[0]}"); a(f"v_add_u32 v{T[2]}, v{T[2]}, v{T[3]}")
    a(f"v_mul_u32_u24 v{T[2]}, 160, v{T[2]}")
    a(f"v_and_b32 v{T[3]}, 3, v{T[0]}"); a(f"v_lshl_add_u32 v{T[5]}, v{T[3]}, 3, v{T[2]}")
    a(f"s_mul_i32 s{sBase}, s{sW}, {3*DSTAGE}")
    a(f"v_add_u32 v{T[5]}, 4096, v{T[5]}")
    for r in range(80): a(f"v_mov_b32 v{ACC+r}, 0")
    a.srd(SRDA, 44, NT * NS_H * 1024, WS_H)
    a("s_sub_u32 s4, s46, 4096"); a("s_subb_u32 s5, s47, 0")
    a.srd(SRDB, 4, DF * 1280 + 4096)
    a.srd(SRDG, 44, 256 * 20480, WS_GT)
    a(f"s_mul_i32 s{tA}, s{sW}, 14"); a(f"s_cmp_eq_u32 s{sW}, 3"); a(f"s_cselect_b32 s{tB}, 1, 0"); a(f"s_sub_u32 s{tA}, s{tA}, s{tB}")
    a(f"s_cmp_ge_u32 s{sW}, 2"); a(f"s_cselect_b32 s{sN}, 13, 14")
    a(f"s_lshl_b32 s{tB}, s{sRB}, 1"); a(f"s_mul_i32 s{tB}, s{tB}, {NS_H}")
    a(f"s_lshl_b32 s{tC}, s{tA}, 1"); a(f"s_add_u32 s{tB}, s{tB}, s{tC}"); a(f"s_lshl_b32 s{sOffA}, s{tB}, 10")
    a(f"s_add_u32 s{sOffA2}, s{sOffA}, {NS_H*1024}")
    a(f"s_mul_i32 s{sOffB}, s{tA}, {32*1280}")
    a(f"s_mul_i32 s{tA}, s{sCBk}, 160"); a(f"s_add_u32 s{sOffB}, s{sOffB}, s{tA}")
    from k2 import sw_barrier as swb
    lab = a.newlabel(L('hw'))
    a(f"s_cmp_eq_u32 s{sW}, 0")
    a(f"s_cbranch_scc0 {lab}_ok")
    a.srd(52, 44, 4096, WS_FLAG)
    a(f"s_lshr_b32 s{tA}, s{sRB}, 2"); a(f"s_lshl_b32 s{tA}, s{tA}, 7")
    a(f"v_min_u32 v{T[0]}, 26, v{VL}"); a(f"v_lshlrev_b32 v{T[0]}, 2, v{T[0]}"); a(f"v_add_u32 v{T[0]}, s{tA}, v{T[0]}")
    a(f"s_mov_b32 s{tC}, 0")
    a.label(lab)
    a(f"buffer_load_dword v{T[1]}, v{T[0]}, s[52:55], 0 offen sc0 sc1")
    a("s_waitcnt vmcnt(0)")
    a(f"v_cmp_ne_u32 vcc, {0 if 'nowait' in DBG2 else 1}, v{T[1]}")
    a("s_cmp_eq_u64 vcc, 0")
    a(f"s_cbranch_scc1 {lab}_ok")
    a("s_sleep 8")
    a(f"s_add_u32 s{tC}, s{tC}, 1")
    a(f"s_cmp_lt_u32 s{tC}, {1<<14}")
    a(f"s_cbranch_scc1 {lab}")
    a.label(lab + "_ok")
    swb(a, sTgt, VSY, VONE, tA, L('sb'))
    if "dn_prio" in DBG2: a("s_setprio 0")
    stamp(2)
    def issue():
        if "dn_nodma" in DBG2: return
        a(f"s_add_u32 s{tA}, s{sBase}, s{sBufD}")
        a(f"s_mov_b32 m0, s{tA}")
        a(f"buffer_load_dwordx4 v{VAs}, {sr(SRDA,4)}, s{sOffA} offen " + ("sc1 lds" if SC1 else "lds"))
        a(f"s_add_u32 m0, s{tA}, {1024 - 256}")
        a(f"buffer_load_dwordx4 v{VAs}, {sr(SRDA,4)}, s{sOffA} offen offset:256 " + ("sc1 lds" if SC1 else "lds"))
        a(f"s_add_u32 m0, s{tA}, 2048")
        a(f"buffer_load_dwordx4 v{VAs}, {sr(SRDA,4)}, s{sOffA2} offen " + ("sc1 lds" if SC1 else "lds"))
        a(f"s_add_u32 m0, s{tA}, {3072 - 256}")
        a(f"buffer_load_dwordx4 v{VAs}, {sr(SRDA,4)}, s{sOffA2} offen offset:256 " + ("sc1 lds" if SC1 else "lds"))
        a(f"s_add_u32 m0, s{tA}, 4096")
        for i in range(4): a(f"buffer_load_dwordx4 v{VB+i}, {sr(SRDB,4)}, s{sOffB} offen offset:{1024*i} lds")
        a(f"s_add_u32 m0, s{tA}, 8192")
        a(f"buffer_load_dwordx4 v{VB+4}, {sr(SRDB,4)}, s{sOffB} offen lds")
        a(f"s_add_u32 s{sOffA}, s{sOffA}, 2048"); a(f"s_add_u32 s{sOffA2}, s{sOffA2}, 2048")
        a(f"s_add_u32 s{sOffB}, s{sOffB}, {32*1280}")
        a(f"s_add_u32 s{sBufD}, s{sBufD}, {DSTAGE}"); a(f"s_cmp_eq_u32 s{sBufD}, {3*DSTAGE}"); a(f"s_cselect_b32 s{sBufD}, 0, s{sBufD}")
    a(f"s_mov_b32 s{sBufD}, 0"); a(f"s_mov_b32 s{sBufR}, 0"); a(f"s_mov_b32 s{sIt}, 0")
    issue(); issue()
    a(f"v_lshlrev_b32 v{T[4]}, 4, v{VL}")
    a.label(L('dn_loop'))
    a(f"s_add_u32 s{tA}, s{sIt}, 2"); a(f"s_cmp_lt_u32 s{tA}, s{sN}")
    a(f"s_cbranch_scc0 {L('dn_tail')}")
    issue()
    a("s_waitcnt vmcnt(18)")
    a(f"s_branch {L('dn_go')}")
    a.label(L('dn_tail'))
    a(f"s_add_u32 s{tA}, s{sIt}, 1"); a(f"s_cmp_lt_u32 s{tA}, s{sN}")
    a(f"s_cbranch_scc0 {L('dn_last')}")
    a("s_waitcnt vmcnt(9)")
    a(f"s_branch {L('dn_go')}")
    a.label(L('dn_last'))
    a("s_waitcnt vmcnt(0)")
    a.label(L('dn_go'))
    a(f"s_add_u32 s{tA}, s{sBase}, s{sBufR}")
    a(f"v_add_u32 v{VRA}, s{tA}, v{T[4]}"); a(f"v_add_u32 v{VR}, s{tA}, v{T[5]}")
    for mt in range(4):
        if "dn_noread" not in DBG2: a(f"ds_read_b128 {vr(AF+4*mt,4)}, v{VRA} offset:{mt*1024}")
    for nt in range(5):
        for r in range(2):
            if "dn_noread" not in DBG2: a(f"ds_read_b64_tr_b16 {vr(WF+4*nt+2*r,2)}, v{VR} offset:{r*1280 + nt*32}")
    for nt in range(5):
        a(f"s_waitcnt lgkmcnt({2*(4-nt)})")
        for mt in range(4):
            acc = ACC + 4 * (5 * mt + nt)
            if "dn_nomfma" not in DBG2: a(f"v_mfma_f32_16x16x32_bf16 {vr(acc,4)}, {vr(WF+4*nt,4)}, {vr(AF+4*mt,4)}, {vr(acc,4)}")
    a(f"s_add_u32 s{sBufR}, s{sBufR}, {DSTAGE}"); a(f"s_cmp_eq_u32 s{sBufR}, {3*DSTAGE}"); a(f"s_cselect_b32 s{sBufR}, 0, s{sBufR}")
    a(f"s_add_u32 s{sIt}, s{sIt}, 1"); a(f"s_cmp_lt_u32 s{sIt}, s{sN}")
    a(f"s_cbranch_scc1 {L('dn_loop')}")
    a("s_nop 7")
    swb(a, sTgt, VSY, VONE, tA, L('sb'))
    a(f"s_mul_i32 s{tA}, s{sW}, 20480")
    a(f"v_add_u32 v{T[1]}, s{tA}, v{T[4]}")
    for q in range(20): a(f"ds_write_b128 v{T[1]}, {vr(ACC+4*q,4)} offset:{q*1024}")
    a("s_waitcnt lgkmcnt(0)")
    swb(a, sTgt, VSY, VONE, tA, L('sb'))
    a(f"s_mul_i32 s{tA}, s{sW}, 5120")
    a(f"v_add_u32 v{T[1]}, s{tA}, v{T[4]}")
    for src in range(4):
        a(f"v_add_u32 v{T[2]}, {src*20480}, v{T[1]}")
        for nt in range(5): a(f"ds_read_b128 {vr(ACC+20*src+4*nt,4)}, v{T[2]} offset:{nt*1024}")
    a("s_waitcnt lgkmcnt(0)")
    for r in range(20): a(f"v_add_f32 v{ACC+r}, v{ACC+r}, v{ACC+20+r}")
    for r in range(20): a(f"v_add_f32 v{ACC+40+r}, v{ACC+40+r}, v{ACC+60+r}")
    for r in range(20): a(f"v_add_f32 v{ACC+r}, v{ACC+r}, v{ACC+40+r}")
    a(f"s_mov_b32 s{tC}, {fhex(-LOG2E)}")
    for r in range(20): a(f"v_mul_f32 v{ACC+40+r}, s{tC}, v{ACC+r}")
    for r in range(20): a(f"v_exp_f32 v{ACC+40+r}, v{ACC+40+r}")
    a("s_nop 0")
    for r in range(20): a(f"v_add_f32 v{ACC+40+r}, 1.0, v{ACC+40+r}")
    for r in range(20): a(f"v_rcp_f32 v{ACC+40+r}, v{ACC+40+r}")
    a("s_nop 0")
    for r in range(20): a(f"v_mul_f32 v{ACC+r}, v{ACC+r}, v{ACC+40+r}")
    a(f"s_lshl_b32 s{tA}, s2, 2"); a(f"s_add_u32 s{tA}, s{tA}, s{sW}"); a(f"s_mul_i32 s{tA}, s{tA}, 5120")
    for nt in range(5):
        so = nt * 1024
        if so < 4096: a(f"buffer_store_dwordx4 {vr(ACC+4*nt,4)}, v{T[4]}, {sr(SRDG,4)}, s{tA} offen offset:{so}")
        else:
            a(f"s_add_u32 s{tA}, s{tA}, 4096")
            a(f"buffer_store_dwordx4 {vr(ACC+4*nt,4)}, v{T[4]}, {sr(SRDG,4)}, s{tA} offen")
```

```python
from asmlib import *
from layout import *

def gen_k3b(a: Asm, name="k3_kernel", stamps=False):
    L = lambda x: f"{name}_{x}"
    VL = 1; T = [2, 3, 4, 5, 6, 7]
    VA, VB, VR = 8, 9, 14
    ACC = 16
    AF = 96
    WF = 176
    GR = 196
    XR = 216
    NV = 228
    SRDA, SRDB, SRDX, SRDO, SRDG = 8, 12, 16, 20, 24
    sW, sRB, sCBk, sOffA, sOffB, sM0, tA, tB, tC, sOffA2 = 28, 29, 30, 31, 32, 33, 34, 35, 36, 37
    a.raw(kernel_header(name))
    a("s_cmp_ge_u32 s2, 256")
    a(f"s_cbranch_scc1 {L('end')}")
    a(f"s_load_dwordx2 s[4:5], s[0:1], {KA_WO}")
    a(f"s_load_dwordx2 s[44:45], s[0:1], {KA_WS}")
    a(f"s_load_dwordx2 s[46:47], s[0:1], {KA_X}")
    a(f"s_load_dwordx2 s[48:49], s[0:1], {KA_OUT}")
    a(f"s_and_b32 s{tA}, s2, 7"); a(f"s_lshr_b32 s{tB}, s2, 3")
    a(f"s_lshr_b32 s{sRB}, s{tA}, 1"); a(f"s_lshl_b32 s{sRB}, s{sRB}, 3"); a(f"s_and_b32 s{tC}, s{tB}, 7"); a(f"s_add_u32 s{sRB}, s{sRB}, s{tC}")
    a(f"s_and_b32 s{sCBk}, s{tA}, 1"); a(f"s_lshl_b32 s{sCBk}, s{sCBk}, 2"); a(f"s_lshr_b32 s{tC}, s{tB}, 3"); a(f"s_add_u32 s{sCBk}, s{sCBk}, s{tC}")
    a(f"v_and_b32 v{VL}, 63, v0")
    a(f"v_lshrrev_b32 v{T[0]}, 6, v0")
    a("s_nop 0")
    a(f"v_readfirstlane_b32 s{sW}, v{T[0]}")
    a(f"v_and_b32 v{T[0]}, 15, v{VL}"); a(f"v_lshrrev_b32 v{T[1]}, 4, v{VL}")
    a(f"v_lshlrev_b32 v{VA}, 4, v{T[0]}")
    a(f"v_lshl_add_u32 v{VA}, v{T[1]}, 9, v{VA}")
    for i in range(5):
        a(f"v_add_u32 v{T[2]}, {64*i}, v{VL}")
        a(f"v_mul_u32_u24 v{T[3]}, 6554, v{T[2]}")
        a(f"v_lshrrev_b32 v{T[3]}, 16, v{T[3]}")
        a(f"v_mul_u32_u24 v{T[4]}, 10, v{T[3]}")
        a(f"v_sub_u32 v{T[4]}, v{T[2]}, v{T[4]}")
        a(f"v_mul_u32_u24 v{T[3]}, 1280, v{T[3]}")
        a(f"v_lshl_add_u32 v{T[3]}, v{T[4]}, 4, v{T[3]}")
        a(f"v_subrev_u32 v{VB+i}, {1024*(i%4)}, v{T[3]}")
        a(f"v_add_u32 v{VB+i}, 4096, v{VB+i}")
    a(f"s_mul_i32 s{sM0}, s{sW}, 25600")
    a(f"s_mul_i32 s{tA}, s{sW}, 5")
    a(f"s_lshl_b32 s{tB}, s{sRB}, 1"); a(f"s_mul_i32 s{tB}, s{tB}, {NS_O}")
    a(f"s_lshl_b32 s{tC}, s{tA}, 1"); a(f"s_add_u32 s{tB}, s{tB}, s{tC}"); a(f"s_lshl_b32 s{sOffA}, s{tB}, 10")
    a(f"s_add_u32 s{sOffA2}, s{sOffA}, {NS_O*1024}")
    a(f"s_mul_i32 s{sOffB}, s{tA}, {32*1280}")
    a(f"s_mul_i32 s{tA}, s{sCBk}, 160"); a(f"s_add_u32 s{sOffB}, s{sOffB}, s{tA}")
    a("s_waitcnt lgkmcnt(0)")
    a.srd(SRDA, 44, NT * NS_O * 1024, WS_O)
    a("s_sub_u32 s4, s4, 4096"); a("s_subb_u32 s5, s5, 0")
    a.srd(SRDB, 4, D * 1280 + 4096)
    for st in range(5):
        a(f"s_add_u32 m0, s{sM0}, {st*5120}")
        for i in range(4): a(f"buffer_load_dwordx4 v{VB+i}, {sr(SRDB,4)}, s{sOffB} offen offset:{1024*i} lds")
        a(f"s_add_u32 m0, s{sM0}, {st*5120 + 4096}")
        a(f"buffer_load_dwordx4 v{VB+4}, {sr(SRDB,4)}, s{sOffB} offen lds")
        for mt in range(4):
            so = sOffA if mt < 2 else sOffA2
            a(f"buffer_load_dwordx4 {vr(AF+16*st+4*mt,4)}, v{VA}, {sr(SRDA,4)}, s{so} offen offset:{(mt&1)*256}")
        if st < 4:
            a(f"s_add_u32 s{sOffA}, s{sOffA}, 2048"); a(f"s_add_u32 s{sOffA2}, s{sOffA2}, 2048")
            a(f"s_add_u32 s{sOffB}, s{sOffB}, {32*1280}")
    a.srd(SRDG, 44, 256 * 20480, WS_G); a.srd(SRDX, 46, S * D * 2); a.srd(SRDO, 48, S * D * 2)
    a(f"v_lshlrev_b32 v{T[5]}, 4, v{VL}")
    a(f"s_lshl_b32 s{tA}, s2, 2"); a(f"s_add_u32 s{tA}, s{tA}, s{sW}"); a(f"s_mul_i32 s{tA}, s{tA}, 5120")
    for nt in range(4): a(f"buffer_load_dwordx4 {vr(GR+4*nt,4)}, v{T[5]}, {sr(SRDG,4)}, s{tA} offen offset:{nt*1024}")
    a(f"s_add_u32 s{tA}, s{tA}, 4096")
    a(f"buffer_load_dwordx4 {vr(GR+16,4)}, v{T[5]}, {sr(SRDG,4)}, s{tA} offen")
    a(f"v_mul_u32_u24 v{T[3]}, 1280, v{T[0]}")
    a(f"v_lshl_add_u32 v{T[3]}, v{T[1]}, 3, v{T[3]}")
    a(f"s_lshl_b32 s{tA}, s{sRB}, 6"); a(f"s_lshl_b32 s{tB}, s{sW}, 4"); a(f"s_add_u32 s{tA}, s{tA}, s{tB}")
    a(f"s_mul_i32 s{tA}, s{tA}, 1280"); a(f"s_mul_i32 s{tB}, s{sCBk}, 160"); a(f"s_add_u32 s38, s{tA}, s{tB}")
    for nt in range(5): a(f"buffer_load_dwordx2 {vr(XR+2*nt,2)}, v{T[3]}, {sr(SRDX,4)}, s38 offen offset:{nt*32}")
    a(f"v_lshrrev_b32 v{T[2]}, 1, v{T[1]}"); a(f"v_lshlrev_b32 v{T[2]}, 4, v{T[2]}")
    a(f"v_and_b32 v{T[4]}, 1, v{T[1]}"); a(f"v_lshl_add_u32 v{T[2]}, v{T[4]}, 2, v{T[2]}")
    a(f"v_lshrrev_b32 v{T[4]}, 2, v{T[0]}"); a(f"v_add_u32 v{T[2]}, v{T[2]}, v{T[4]}")
    a(f"v_mul_u32_u24 v{T[2]}, 160, v{T[2]}")
    a(f"v_and_b32 v{T[4]}, 3, v{T[0]}"); a(f"v_lshl_add_u32 v{VR}, v{T[4]}, 3, v{T[2]}")
    a(f"v_add_u32 v{VR}, s{sM0}, v{VR}")
    for r in range(80): a(f"v_mov_b32 v{ACC+r}, 0")
    for st in range(5):
        a(f"s_waitcnt vmcnt({9*(4-st) + 10})")
        for nt in range(5):
            for r in range(2): a(f"ds_read_b64_tr_b16 {vr(WF+4*nt+2*r,2)}, v{VR} offset:{st*5120 + r*1280 + nt*32}")
        for nt in range(5):
            a(f"s_waitcnt lgkmcnt({2*(4-nt)})")
            for mt in range(4):
                acc = ACC + 4 * (5 * mt + nt)
                a(f"v_mfma_f32_16x16x32_bf16 {vr(acc,4)}, {vr(WF+4*nt,4)}, {vr(AF+16*st+4*mt,4)}, {vr(acc,4)}")
    a("s_nop 7")
    a("s_barrier")
    a(f"s_mul_i32 s{tA}, s{sW}, 20480")
    a(f"v_add_u32 v{T[1]}, s{tA}, v{T[5]}")
    for q in range(20): a(f"ds_write_b128 v{T[1]}, {vr(ACC+4*q,4)} offset:{q*1024}")
    a("s_waitcnt lgkmcnt(0)")
    a("s_barrier")
    a(f"s_mul_i32 s{tA}, s{sW}, 5120")
    a(f"v_add_u32 v{T[1]}, s{tA}, v{T[5]}")
    for src in range(4):
        a(f"v_add_u32 v{T[2]}, {src*20480}, v{T[1]}")
        for nt in range(5): a(f"ds_read_b128 {vr(ACC+20*src+4*nt,4)}, v{T[2]} offset:{nt*1024}")
    a("s_waitcnt vmcnt(0) lgkmcnt(0)")
    for r in range(20): a(f"v_add_f32 v{ACC+r}, v{ACC+r}, v{ACC+20+r}")
    for r in range(20): a(f"v_add_f32 v{ACC+40+r}, v{ACC+40+r}, v{ACC+60+r}")
    for r in range(20): a(f"v_add_f32 v{ACC+r}, v{ACC+r}, v{ACC+40+r}")
    for nt in range(5):
        for q in range(2):
            a(f"v_lshlrev_b32 v{T[0]}, 16, v{XR+2*nt+q}")
            a(f"v_and_b32 v{T[1]}, 0xffff0000, v{XR+2*nt+q}")
            r = 4 * nt + 2 * q
            a(f"v_fma_f32 v{T[0]}, v{ACC+r}, v{GR+r}, v{T[0]}")
            a(f"v_fma_f32 v{T[1]}, v{ACC+r+1}, v{GR+r+1}, v{T[1]}")
            a(f"v_cvt_pk_bf16_f32 v{XR+2*nt+q}, v{T[0]}, v{T[1]}")
        a(f"buffer_store_dwordx2 {vr(XR+2*nt,2)}, v{T[3]}, {sr(SRDO,4)}, s38 offen offset:{nt*32}")
    a.label(L('end'))
    a("s_endpgm")
    return NV, 102400
```

```python
from build import *
from k1 import gen_k1
from k2 import gen_k2, LDS_TOTAL
from k3b import gen_k3b
import sys
st = "stamps" in sys.argv
pa = 0; pg = 0
for x in sys.argv:
    if x.startswith("pa="): pa = int(x[3:])
    if x.startswith("pg="): pg = int(x[3:])
import k2
if 'nosc1' in sys.argv: k2.SC1 = False
for x in sys.argv:
    if x.startswith('dbg='): k2.DBG2.add(x[4:])
ks = []
a = Asm(); nv = gen_k1(a, "k1_kernel", nb=5); ks.append(("k1_kernel", a.text(), nv, 256, 512, 5*32768))
a = Asm(); nv = gen_k2(a, "k2_kernel", stamps=st, prio_attn=pa, prio_gemm=pg, serial=('serial' in sys.argv), cluster=('cluster' in sys.argv)); ks.append(("k2_kernel", a.text(), nv, 256, 512, LDS_TOTAL))
a = Asm(); nv, lds = gen_k3b(a, "k3_kernel"); ks.append(("k3_kernel", a.text(), nv, 256, 256, lds))
open(sys.argv[1], "w").write(assemble(ks))
```
